```python
import torch

def _softmax(x, axis=-1):
    return torch.softmax(x, dim=axis)

def _gelu(x):
    return torch.nn.functional.gelu(x, approximate='tanh')

def _silu(x):
    return torch.nn.functional.silu(x)

def _sigmoid(x):
    return torch.sigmoid(x)

def _layernorm(x, axis=-1, eps=1e-05):
    m = x.mean(dim=axis, keepdim=True)
    v = x.var(dim=axis, keepdim=True, unbiased=False)
    return (x - m) / torch.sqrt(v + eps)

def _scatter_add(tgt, idx, src, axis=0):
    return tgt.clone().index_add_(axis, idx, src)

def _segment_sum(src, seg, n):
    out = torch.zeros((n,) + src.shape[1:], dtype=src.dtype)
    return out.index_add_(0, seg, src)

def _pad(x, pw):
    flat = tuple((v for pair in reversed(pw) for v in pair))
    return torch.nn.functional.pad(x, flat)
kernel_name = 'sequential_preLN__memory_aug_recurrent_mem_tr__glu_gated_geglu__prompt'

def setup_inputs():

    _w = lambda a: (lambda t: t.to(torch.bfloat16) if t.is_floating_point() else t)(torch.as_tensor(a))

    def _A_setup():
        B, S, Dm = (1, 2048, 512)
        H, Dh = (32, 128)
        M, seg = (8, 32)
        seg = min(seg, S)
        S = S // seg * seg
        return {'x': _w((lambda *s: torch.randn(*s, dtype=torch.bfloat16) * 0.05)(B, S, Dm)), 'mem0': _w((lambda *s: torch.randn(*s, dtype=torch.bfloat16) * 0.2)(B, M, Dm)), 'Wq': _w((lambda *s: torch.randn(*s, dtype=torch.bfloat16) * 1.6)(Dm, H, Dh) * Dm ** (-0.5)), 'Wk': _w((lambda *s: torch.randn(*s, dtype=torch.bfloat16) * 1.6)(Dm, H, Dh) * Dm ** (-0.5)), 'Wv': _w((lambda *s: torch.randn(*s, dtype=torch.bfloat16) * 0.2)(Dm, H, Dh) * Dm ** (-0.5)), 'Wo': _w((lambda *s: torch.randn(*s, dtype=torch.bfloat16) * 0.2)(H, Dh, Dm) * (H * Dh) ** (-0.5)), 'seg_len': seg}
    _A_in = _A_setup()

    def _B_setup():
        B, S, Dm, Df = (1, 2048, 512, 1792)
        return {'x': _w((lambda *s: torch.randn(*s, dtype=torch.bfloat16) * 0.05)(B, S, Dm)), 'w_gate': _w((lambda *s: torch.randn(*s, dtype=torch.bfloat16) * 0.4)(Dm, Df) * Dm ** (-0.5)), 'w_up': _w((lambda *s: torch.randn(*s, dtype=torch.bfloat16) * 0.4)(Dm, Df) * Dm ** (-0.5)), 'w_down': _w((lambda *s: torch.randn(*s, dtype=torch.bfloat16) * 0.4)(Df, Dm) * Df ** (-0.5))}
    _B_in = _B_setup()
    return {'A_x': _A_in['x'], 'A_mem0': _A_in['mem0'], 'A_Wq': _A_in['Wq'], 'A_Wk': _A_in['Wk'], 'A_Wv': _A_in['Wv'], 'A_Wo': _A_in['Wo'], 'A_seg_len': _A_in['seg_len'], 'B_x': _B_in['x'], 'B_w_gate': _B_in['w_gate'], 'B_w_up': _B_in['w_up'], 'B_w_down': _B_in['w_down']}

def reference(A_x, A_mem0, A_Wq, A_Wk, A_Wv, A_Wo, A_seg_len, B_x, B_w_gate, B_w_up, B_w_down):

    def _A_ref(x, mem0, Wq, Wk, Wv, Wo, seg_len):
        B, S, Dm = x.shape
        H, Dh = (Wq.shape[1], Wq.shape[2])
        M = mem0.shape[1]
        scale = Dh ** (-0.5)
        n_seg = S // seg_len
        L = M + seg_len
        idx = torch.arange(L)
        mask = (idx[:, None] < M) | (idx[:, None] >= idx[None, :])
        mem = mem0
        outs = []
        for s in range(n_seg):
            xs = x[:, s * seg_len:(s + 1) * seg_len, :].clone()
            h = torch.concatenate([mem, xs], axis=1)
            q = torch.einsum('btd,dhe->bhte', h, Wq)
            k = torch.einsum('btd,dhe->bhte', h, Wk)
            v = torch.einsum('btd,dhe->bhte', h, Wv)
            scores = torch.einsum('bhqe,bhke->bhqk', q, k) * scale
            scores = torch.where(mask[None, None], scores, -1000000000.0)
            p = _softmax(scores, axis=-1)
            o = torch.einsum('bhqk,bhke->bhqe', p, v)
            o = torch.einsum('bhte,hed->btd', o, Wo)
            mem = o[:, :M, :].clone()
            outs.append(o[:, M:, :])
        return torch.concatenate(outs, axis=1)

    def _B_ref(x, w_gate, w_up, w_down):
        g = torch.einsum('bsd,df->bsf', x, w_gate)
        u = torch.einsum('bsd,df->bsf', x, w_up)
        h = _gelu(g) * u
        return torch.einsum('bsf,fd->bsd', h, w_down)
    x = A_x
    h = x + _A_ref(_layernorm(x, axis=-1), A_mem0, A_Wq, A_Wk, A_Wv, A_Wo, A_seg_len)
    h2 = h + _B_ref(_layernorm(h, axis=-1), B_w_gate, B_w_up, B_w_down)
    return h2
```

```python
import re

REG_RE = re.compile(r'^(-?\|?|abs\()?([vas])(\d+)\)?\|?$')
RANGE_RE = re.compile(r'^(-?)([vas])\[(\d+):(\d+)\]$')
TRANS = ('v_exp_f32', 'v_log_f32', 'v_rcp_f32', 'v_rsq_f32', 'v_sqrt_f32', 'v_sin_f32', 'v_cos_f32', 'v_rcp_iflag_f32')


def regs_of(op):
    op = op.strip()
    m = RANGE_RE.match(op)
    if m:
        return {(m.group(2), i) for i in range(int(m.group(3)), int(m.group(4)) + 1)}
    m = REG_RE.match(op)
    if m:
        return {(m.group(2), int(m.group(3)))}
    if op == 'vcc':
        return {('s', 'vcc')}
    if op in ('vcc_lo', 'vcc_hi'):
        return {('s', 'vcc')}
    if op == 'exec':
        return {('s', 'exec')}
    if op == 'm0':
        return {('s', 'm0')}
    return set()


def split_ops(s):
    out, depth, cur = [], 0, ''
    for ch in s:
        if ch in '[(':
            depth += 1
        if ch in '])':
            depth -= 1
        if ch == ',' and depth == 0:
            out.append(cur.strip())
            cur = ''
        else:
            cur += ch
    if cur.strip():
        out.append(cur.strip())
    return out


class Ins:
    __slots__ = ('text', 'mn', 'ops', 'mods', 'label', 'defs', 'uses', 'kind', 'passes', 'A', 'B', 'C', 'D',
                 'dpp', 'target', 'stdata', 'lds_dma')

    def __init__(self, text):
        self.text = text
        code = text.split(';')[0].strip()
        self.label = None
        self.mn = None
        self.defs = set(); self.uses = set(); self.kind = None
        self.passes = 0
        self.A = self.B = self.C = self.D = set()
        self.dpp = False; self.target = None; self.stdata = set(); self.lds_dma = False
        if not code:
            return
        if code.endswith(':'):
            self.label = code[:-1]
            return
        if code.startswith('.'):
            return
        parts = code.split(None, 1)
        mn = parts[0]
        self.mn = mn
        rest = parts[1] if len(parts) > 1 else ''
        ops = split_ops(rest)
        mods = ''
        if ops:
            last = ops[-1].split(None, 1)
            if len(last) > 1 and not ops[-1].startswith('hwreg') and not mn.startswith('s_waitcnt'):
                ops[-1] = last[0]
                mods = last[1]
        self.ops = ops
        self.mods = mods
        R = [regs_of(o) for o in ops]
        base = re.sub(r'_(e32|e64|dpp|sdwa)$', '', mn)
        if mn.startswith('v_mfma') or mn.startswith('v_smfmac'):
            self.kind = 'mfma'
            self.passes = 8 if '32x32' in mn else (2 if '4x4x4' in mn else 4)
            self.D = R[0]; self.A = R[1]; self.B = R[2]
            if mn.startswith('v_smfmac'):
                self.C = R[0]
                self.B = R[2] | R[3]
            else:
                self.C = R[3]
            self.defs = set(self.D); self.uses = self.A | self.B | self.C
        elif mn.startswith('v_'):
            self.kind = 'valu'
            self.dpp = mn.endswith('_dpp') or 'quad_perm' in mods or 'row_' in mods
            if base in ('v_swap_b32', 'v_permlane16_swap_b32', 'v_permlane32_swap_b32'):
                self.defs = R[0] | R[1]; self.uses = R[0] | R[1]
            elif base == 'v_nop':
                pass
            elif base.startswith('v_cmp'):
                self.defs = set(R[0]); self.uses = set().union(*R[1:])
                if base.startswith('v_cmpx'):
                    self.defs |= {('s', 'exec')}
            elif base in ('v_add_co_u32', 'v_sub_co_u32', 'v_addc_co_u32', 'v_subb_co_u32'):
                self.defs = R[0] | R[1]; self.uses = set().union(*R[2:])
            else:
                self.defs = set(R[0]); self.uses = set().union(*R[1:]) if len(R) > 1 else set()
                if base in ('v_fmac_f32', 'v_dot2c_f32_bf16', 'v_writelane_b32', 'v_pk_fmac_f16') or self.dpp:
                    self.uses |= R[0]
        elif mn.startswith('ds_'):
            self.kind = 'ds'
            if mn.startswith('ds_read') or 'permute' in mn or 'swizzle' in mn or '_rtn' in mn:
                self.defs = set(R[0]); self.uses = set().union(*R[1:])
            else:
                self.uses = set().union(*R)
        elif mn.startswith('buffer_') or mn.startswith('global_'):
            self.kind = 'vmem'
            modl = mods.split()
            if mn in ('buffer_wbl2', 'buffer_inv'):
                pass
            elif 'load' in mn:
                if 'lds' in modl or '_lds_' in mn:
                    self.lds_dma = True
                    self.uses = set().union(*R) | {('s', 'm0')}
                else:
                    self.defs = set(R[0]); self.uses = set().union(*R[1:])
            elif 'store' in mn:
                self.uses = set().union(*R)
                if mn.endswith('x4') or mn.endswith('x3'):
                    self.stdata = set(R[0]) if mn.startswith('buffer_') else set(R[1])
            elif 'atomic' in mn:
                self.uses = set().union(*R)
                if 'sc0' in modl:
                    self.defs = set(R[0])
        elif mn.startswith('s_'):
            self.kind = 'salu'
            if mn.startswith('s_cbranch') or mn == 's_branch':
                self.target = ops[0]
                if 'vcc' in mn:
                    self.uses = {('s', 'vcc')}
            elif mn.startswith('s_cmp') or mn.startswith('s_bitcmp') or mn in ('s_waitcnt', 's_nop', 's_barrier', 's_endpgm', 's_sleep', 's_setprio'):
                self.uses = set().union(*R) if R else set()
            elif 'saveexec' in mn:
                self.defs = R[0] | {('s', 'exec')}; self.uses = set().union(*R[1:]) | {('s', 'exec')}
            else:
                self.defs = set(R[0]) if R else set(); self.uses = set().union(*R[1:]) if len(R) > 1 else set()
        else:
            raise ValueError('unknown instruction ' + text)

    def states(self):
        if self.mn is None:
            return 0
        if self.mn == 's_nop':
            return int(self.ops[0], 0) + 1
        return 1


def vonly(s):
    return {r for r in s if r[0] in 'va'}


def sonly(s):
    return {r for r in s if r[0] == 's'}


def need(p, c):
    n = 0
    pb = re.sub(r'_(e32|e64|dpp|sdwa)$', '', p.mn)
    cb = re.sub(r'_(e32|e64|dpp|sdwa)$', '', c.mn)
    if p.kind == 'valu':
        vd = vonly(p.defs); sd = sonly(p.defs)
        if c.kind == 'mfma' and vd & c.uses:
            n = max(n, 2)
        if c.kind == 'valu':
            if vd & c.uses:
                if pb in TRANS and cb not in TRANS:
                    n = max(n, 1)
                if cb.startswith('v_permlane') or c.dpp:
                    n = max(n, 2)
                if cb in ('v_readlane_b32', 'v_readfirstlane_b32'):
                    n = max(n, 1)
            if sd & c.uses:
                n = max(n, 4 if cb in ('v_readlane_b32', 'v_writelane_b32') else 2)
            if ('s', 'exec') in sd:
                n = max(n, 5 if c.dpp else 4)
        if c.kind == 'vmem' and sd & c.uses:
            n = max(n, 5)
        if c.kind == 'mfma' and ('s', 'exec') in sd:
            n = max(n, 4)
        if c.kind == 'salu' and sd & c.uses:
            n = max(n, 1)
    if p.kind == 'mfma':
        P = {2: 0, 4: 1, 8: 2, 16: 3}[p.passes]
        if c.kind == 'mfma':
            if p.D & c.C:
                if p.D == c.C and p.mn == c.mn:
                    n = max(n, (2, 0, 0, 0)[P])
                else:
                    n = max(n, (4, 6, 10, 18)[P])
            elif p.D & c.D:
                n = max(n, (4, 6, 10, 18)[P])
            if p.D & (c.A | c.B):
                n = max(n, (5, 8, 12, 20)[P])
        elif c.kind in ('valu', 'vmem', 'ds'):
            if p.D & (c.uses | c.defs):
                n = max(n, (5, 8, 12, 20)[P])
            if c.kind == 'valu' and p.C & c.defs:
                n = max(n, (1, 3, 7, 15)[P])
    if p.kind == 'vmem' and p.stdata:
        if p.stdata & c.defs:
            n = max(n, 2 if c.kind in ('valu', 'mfma') else 1)
    if p.kind == 'salu' and ('s', 'm0') in p.defs and c.lds_dma:
        n = max(n, 1)
    return n


class Asm:
    def __init__(self):
        self.ins = []

    def __call__(self, text):
        for line in text.split('\n'):
            if line.strip():
                self.ins.append(Ins(line.strip()))
        return self

    def pad(self, verbose=False):
        MAXD = 20
        ins = self.ins
        lab = {x.label: i for i, x in enumerate(ins) if x.label}
        jumps = {}
        for i, x in enumerate(ins):
            if x.target is not None:
                jumps.setdefault(lab[x.target], []).append(i)
        extra = [0] * len(ins)
        for i, c in enumerate(ins):
            if c.mn is None or c.mn == 's_nop':
                continue
            short = 0
            stack = [(i, 0)]
            seen = {}
            while stack:
                j, d = stack.pop()
                preds = []
                if j > 0 and ins[j - 1].mn not in ('s_branch', 's_endpgm'):
                    preds.append(j - 1)
                if ins[j].label:
                    preds += jumps.get(j, [])
                for q in preds:
                    p = ins[q]
                    if p.mn is not None:
                        nd = need(p, c)
                        if nd > d:
                            short = max(short, nd - d)
                    d2 = d + p.states() + extra[q]
                    if d2 < MAXD and seen.get(q, 99) > d2:
                        seen[q] = d2
                        stack.append((q, d2))
            if short:
                extra[i] = short
                if verbose:
                    print('pad', short, 'before', c.text)
        out = []
        for i, c in enumerate(ins):
            s = extra[i]
            while s > 0:
                k = min(s, 16)
                out.append(Ins(f's_nop {k - 1}'))
                s -= k
            out.append(c)
        self.ins = out
        return sum(extra)

    def text(self):
        o = []
        for x in self.ins:
            if x.label or x.text.startswith('.'):
                o.append(x.text)
            else:
                o.append('    ' + x.text)
        return '\n'.join(o) + '\n'
```

```python
from asmlib import Asm

NAME = 'sequential_preLN__memory_aug_recurrent_mem_tr__glu_gated_geglu__prompt'

WS_BYTES = 0x10000000
XN = 0x0000000
QKV = 0x0200000
QKV_H = 24576
QKV_S = 32 * QKV_H
KVM = 0x3220000
KVM_S = 32 * 4096
RPART = 0x3C00000
RP_R = 16384 + 128
RP_SLOT = 0x100000
RM = 0x3E00000
RM_SLOT = 0x2000
PROF = 0x3F00000
FLAG = 0x3E10000
F_P = FLAG
F_R = FLAG + 0x2000
F_C = FLAG + 0x4000
MBOX = FLAG + 0x8000
CPART = 0x4000000
CP_G = 0x400000
CP_R = 32768 + 128
CP_2 = 0x200000
HN = 0x5800000
NP_, NC_ = 2, 5
OOB = 0x7FFFFF00

S_DBG = 4
S_WS = 8
S_T = 12
S_H = 16
S_W = 17
S_XCC = 18
S_G = 19
P_X, P_MEM, P_WQ, P_WK, P_WV, P_WO = 64, 66, 68, 70, 72, 74
P_WG, P_WU, P_WD, P_OUT, P_DBG, P_WS = 80, 82, 84, 86, 88, 90


def v(a, n=1):
    return f'v{a}' if n == 1 else f'v[{a}:{a + n - 1}]'


def ac(a, n=1):
    return f'a{a}' if n == 1 else f'a[{a}:{a + n - 1}]'


def srd(a, d, p, nbytes):
    a(f's_mov_b32 s{d}, s{p}')
    a(f's_mov_b32 s{d + 1}, s{p + 1}')
    a(f's_mov_b32 s{d + 2}, {nbytes}')
    a(f's_mov_b32 s{d + 3}, 0x00020000')


def load_args(a):
    a('s_load_dwordx16 s[64:79], s[0:1], 0')
    a('s_load_dwordx8 s[80:87], s[0:1], 64')
    a('s_load_dwordx4 s[88:91], s[0:1], 96')
    a(f's_getreg_b32 s{S_XCC}, hwreg(HW_REG_XCC_ID, 0, 4)')
    a('v_lshrrev_b32 v1, 6, v0')
    a(f'v_readfirstlane_b32 s{S_W}, v1')
    a('v_and_b32 v0, 63, v0')
    a('s_waitcnt lgkmcnt(0)')
    srd(a, S_DBG, P_DBG, 256)
    srd(a, S_WS, P_WS, WS_BYTES)


def descriptor(name, vgpr=512, accum=256, sgpr=102):
    return f'''.section .rodata,"a"
.p2align 6
.amdhsa_kernel {name}
  .amdhsa_next_free_vgpr {vgpr}
  .amdhsa_next_free_sgpr {sgpr}
  .amdhsa_accum_offset {accum}
  .amdhsa_group_segment_fixed_size 0
  .amdhsa_kernarg_size 112
  .amdhsa_user_sgpr_count 2
  .amdhsa_user_sgpr_kernarg_segment_ptr 1
  .amdhsa_system_sgpr_workgroup_id_x 1
  .amdhsa_float_denorm_mode_32 3
.end_amdhsa_kernel
'''


def wrap(launches, kernels):
    o = ''
    for (n, g, b, l) in launches:
        if len(launches) == 1 and n == NAME + '_kernel':
            o += f'; @launch grid=({g},1,1) block=({b},1,1) lds={l}\n'
        else:
            o += f'; @launch kernel={n} grid=({g},1,1) block=({b},1,1) lds={l}\n'
    o += '.amdgcn_target "amdgcn-amd-amdhsa--gfx950"\n.text\n'
    for (n, a) in kernels:
        o += f'.globl {n}\n.p2align 8\n.type {n},@function\n{n}:\n' + a.text()
    for (n, a) in kernels:
        o += descriptor(n)
    return o
```

```python
from common import *
from weights import *
from prod import f32, merge_stats
import math

WS = f's[{S_WS}:{S_WS + 3}]'
S_X = 44
S_O = 48
vA, vKld, vPst, vRld, vRow, vHst, vHrd, vKtr, vVm, vFl, vOne, vF4, vActW, vOw, T = 0, 1, 2, 3, 4, 5, 6, 8, 9, 10, 11, 12, 13, 14, 15
BIAS, MMASK, HP, SEL = 16, 24, 26, 28
Q, K, V, KM, VM, S, PP, OT, TT = 32, 48, 80, 96, 112, 120, 132, 140, 156
OB, ACC = 96, 128
RED, RD, XR = 32, 64, 68
XB, GU, AT = 32, 48, 64
AB = 96
WD = 192
L_KVM, L_O, L_HN, L_ACT, L_ST = 0, 0x4000, 0x8000, 0x6000, 0x7000
sSEG, sIT, sQKV, sKVM, sP1W, sP1R, sHNW, sHNR, sFW, sFR, sFP, sFRR, sROW, sTRY, sC0, sNEED = 24, 25, 26, 27, 28, 29, 30, 31, 32, 33, 34, 35, 36, 37, 38, 40
sT = 41
CEXP = f32((128 ** -0.5) * 1.4426950408889634)
MAXTRY = 400000


def c_pieces():
    ps = [RowPiece(P_WO, 4096 * 1024, 17, kk, (lambda kk: lambda ct, x: ac(16 * ct + 4 * kk + 2 * x, 2))(kk)) for kk in range(4)]
    ps += [FfnPiece(P_WG, hf, lambda k, x: ac(128 + 4 * k + 2 * x, 2)) for hf in range(2)]
    ps += [FfnPiece(P_WU, hf, lambda k, x: ac(192 + 4 * k + 2 * x, 2)) for hf in range(2)]
    ps += [RowPiece(P_WD, 1792 * 1024, 16, kd, (lambda kd: lambda ct, x: v(WD + 8 * ct + 4 * kd + 2 * x, 2))(kd)) for kd in range(2)]
    return ps


def c_scalars(a):
    a(f's_mov_b32 s{sSEG}, s{S_G}')
    a(f's_mov_b32 s{sIT}, 0')
    a(f's_mul_i32 s{S_A}, s{S_G}, {QKV_S}')
    a(f's_mul_i32 s{S_B}, s{S_H}, {QKV_H}')
    a(f's_add_u32 s{S_A}, s{S_A}, s{S_B}')
    a(f's_add_u32 s{sQKV}, s{S_A}, {QKV}')
    a(f's_mul_i32 s{S_A}, s{S_G}, {KVM_S}')
    a(f's_lshl_b32 s{S_B}, s{S_H}, 12')
    a(f's_add_u32 s{S_A}, s{S_A}, s{S_B}')
    a(f's_add_u32 s{sKVM}, s{S_A}, {KVM}')
    a(f's_mul_i32 s{S_A}, s{S_G}, {CP_G}')
    a(f's_lshl_b32 s{S_B}, s{S_W}, 8')
    a(f's_add_u32 s{S_A}, s{S_A}, s{S_B}')
    a(f's_add_u32 s{S_A}, s{S_A}, {CPART}')
    a(f's_lshl_b32 s{S_B}, s{S_H}, 10')
    a(f's_add_u32 s{sP1W}, s{S_A}, s{S_B}')
    a(f's_mul_i32 s{S_B}, s{S_H}, {CP_R}')
    a(f's_add_u32 s{sP1R}, s{S_A}, s{S_B}')
    a(f's_lshl_b32 s{S_A}, s{S_G}, 15')
    a(f's_lshl_b32 s{S_B}, s{S_W}, 12')
    a(f's_add_u32 s{S_A}, s{S_A}, s{S_B}')
    a(f's_add_u32 s{sHNR}, s{S_A}, {HN}')
    a(f's_lshr_b32 s{S_A}, s{S_H}, 4')
    a(f's_lshl_b32 s{S_A}, s{S_A}, 14')
    a(f's_and_b32 s{S_B}, s{S_H}, 15')
    a(f's_lshl_b32 s{S_B}, s{S_B}, 7')
    a(f's_add_u32 s{S_A}, s{S_A}, s{S_B}')
    a(f's_add_u32 s{sHNW}, s{sHNR}, s{S_A}')
    a(f's_mul_i32 s{S_A}, s{S_G}, {3 * 512}')
    a(f's_lshl_b32 s{S_B}, s{S_W}, 7')
    a(f's_add_u32 s{S_A}, s{S_A}, s{S_B}')
    a(f's_add_u32 s{sFR}, s{S_A}, {F_C}')
    a(f's_lshl_b32 s{S_B}, s{S_H}, 2')
    a(f's_add_u32 s{sFW}, s{sFR}, s{S_B}')
    a(f's_lshl_b32 s{S_A}, s{S_H}, 7')
    a(f's_add_u32 s{sFP}, s{S_A}, {F_P}')
    a(f's_add_u32 s{sFRR}, s{S_A}, {F_R}')
    a(f's_lshl_b32 s{S_A}, s{S_G}, 5')
    a(f's_add_u32 s{S_A}, s{S_A}, s{S_H}')
    a(f's_lshl_b32 s{S_A}, s{S_A}, 10')
    a(f's_lshl_b32 s{S_B}, s{S_W}, 8')
    a(f's_add_u32 s{sROW}, s{S_A}, s{S_B}')
    a(f's_mov_b32 s{sC0}, {CEXP}')
    a(f's_mov_b32 s{sC0 + 1}, {CEXP}')
    srd(a, S_X, P_X, 2048 * 1024)
    srd(a, S_O, P_OUT, 2048 * 1024)


def c_init_flags(a, fl=''):
    a('v_cmp_eq_u32 vcc, 0, v0')
    a(f'v_mov_b32 v3, {OOB}')
    a(f'v_cndmask_b32 v{vOne}, v3, v0, vcc')
    a('v_mov_b32 v3, 0')
    for hop in range(3):
        a(f'buffer_store_dword v3, v{vOne}, {WS}, s{sFW} offen offset:{hop * 512} {fl}')


def c_setup(a):
    L, t0, t1, t2 = 32, 33, 34, 35
    a(f'v_mov_b32 v{L}, v0')
    n, g = 36, 37
    a(f'v_and_b32 v{n}, 15, v{L}')
    a(f'v_lshrrev_b32 v{g}, 4, v{L}')
    a(f'v_lshlrev_b32 v{vA}, 4, v{L}')
    a(f'v_bfe_u32 v{t0}, v{L}, 2, 1')
    a(f'v_lshlrev_b32 v{t0}, 12, v{t0}')
    a(f'v_lshl_add_u32 v{t0}, v{g}, 8, v{t0}')
    a(f'v_bfe_u32 v{t1}, v{L}, 3, 1')
    a(f'v_lshl_add_u32 v{t0}, v{t1}, 6, v{t0}')
    a(f'v_and_b32 v{t1}, 3, v{L}')
    a(f'v_lshl_add_u32 v{vKld}, v{t1}, 4, v{t0}')
    a(f'v_mul_u32_u24 v{t0}, {CP_R}, v{n}')
    a(f'v_lshl_add_u32 v{vPst}, v{g}, 4, v{t0}')
    a(f'v_lshlrev_b32 v{t0}, 10, v{g}')
    a(f'v_lshl_add_u32 v{vRld}, v{n}, 4, v{t0}')
    a(f'v_mov_b32 v{t2}, {OOB}')
    a(f'v_cmp_gt_u32 vcc, 32, v{L}')
    a(f'v_lshlrev_b32 v{t0}, 4, v{n}')
    a(f'v_lshl_add_u32 v{t0}, v{g}, 3, v{t0}')
    a(f'v_cndmask_b32 v{vRow}, v{t2}, v{t0}, vcc')
    a(f's_bfe_u32 s{S_A}, s{S_H}, {1 | (3 << 16)}')
    a(f'v_and_b32 v{t0}, 7, v{L}')
    a(f'v_xor_b32 v{t0}, s{S_A}, v{t0}')
    a(f'v_lshlrev_b32 v{t0}, 4, v{t0}')
    a(f'v_bfe_u32 v{t1}, v{L}, 3, 1')
    a(f'v_lshl_add_u32 v{t0}, v{t1}, 11, v{t0}')
    a(f'v_lshl_add_u32 v{t0}, v{g}, 3, v{t0}')
    a(f'v_cndmask_b32 v{vHst}, v{t2}, v{t0}, vcc')
    a(f'v_lshrrev_b32 v{t0}, 1, v{n}')
    a(f'v_xor_b32 v{t0}, v{t0}, v{g}')
    a(f'v_lshlrev_b32 v{t0}, 4, v{t0}')
    a(f'v_lshl_add_u32 v{vHrd}, v{n}, 7, v{t0}')
    a(f'v_xor_b32 v{vHrd + 1}, 64, v{vHrd}')
    a(f's_lshl_b32 s{S_A}, s{S_W}, 12')
    a(f'v_and_b32 v{t0}, 1, v{L}')
    a(f'v_lshlrev_b32 v{t0}, 4, v{t0}')
    a(f'v_lshrrev_b32 v{t1}, 2, v{L}')
    a(f'v_add_u32 v{t0}, v{t0}, v{t1}')
    a(f'v_lshlrev_b32 v{t0}, 4, v{t0}')
    a(f'v_add_u32 v{vKtr}, s{S_A}, v{t0}')
    a(f's_lshr_b32 s{S_B}, s{S_W}, 1')
    a(f's_lshl_b32 s{S_B}, s{S_B}, 11')
    a(f's_add_u32 s{S_A}, s{S_A}, s{S_B}')
    a(f's_add_u32 s{S_A}, s{S_A}, 8')
    a(f'v_and_b32 v{t0}, 31, v{L}')
    a(f'v_lshlrev_b32 v{t1}, 4, v{t0}')
    a(f'v_add_u32 v{vVm}, s{S_A}, v{t1}')
    a(f'v_lshlrev_b32 v{vFl}, 2, v{t0}')
    a(f'v_cmp_eq_u32 vcc, 0, v{L}')
    a(f'v_cndmask_b32 v{vOne}, v{t2}, v{L}, vcc')
    a(f'v_and_b32 v{t0}, 3, v{L}')
    a(f'v_lshlrev_b32 v{vF4}, 2, v{t0}')
    a(f's_and_b32 s{S_A}, s{S_W}, 1')
    a(f's_lshr_b32 s{S_B}, s{S_W}, 1')
    a(f's_lshl_b32 s{sT}, s{S_A}, 3')
    a(f's_lshl_b32 s{sT + 1}, s{S_B}, 10')
    a(f's_add_u32 s{sT}, s{sT}, s{sT + 1}')
    a(f'v_add_u32 v{vActW}, s{sT}, v{vA}')
    a(f's_lshl_b32 s{sT}, s{S_A}, 12')
    a(f's_lshl_b32 s{sT + 1}, s{S_B}, 11')
    a(f's_add_u32 s{sT}, s{sT}, s{sT + 1}')
    a(f'v_add_u32 v{vOw}, s{sT}, v{vA}')
    a(f's_lshl_b32 s{S_A}, s{S_A}, 4')
    a(f'v_add_u32 v{t0}, s{S_A}, v{n}')
    a(f'v_and_b32 v{t1}, 1, v{g}')
    a(f'v_lshlrev_b32 v{t1}, 4, v{t1}')
    a(f'v_sub_u32 v{t0}, v{t0}, v{t1}')
    a(f'v_lshrrev_b32 v{t1}, 1, v{g}')
    a(f'v_lshlrev_b32 v{t1}, 2, v{t1}')
    a(f'v_sub_u32 v{t0}, v{t0}, v{t1}')
    a(f'v_mov_b32 v{t1}, 0xff800000')
    for hh in range(2):
        for r in range(4):
            a(f'v_cmp_gt_i32 vcc, {8 * hh + r}, v{t0}')
            a(f'v_cndmask_b32 v{BIAS + 4 * hh + r}, 0, v{t1}, vcc')
    a(f'v_cmp_lt_u32 vcc, 1, v{g}')
    a(f'v_cndmask_b32 v{MMASK}, 0, v{t1}, vcc')
    a(f'v_and_b32 v{t0}, 1, v{n}')
    a(f'v_lshlrev_b32 v{t0}, 4, v{t0}')
    a(f'v_mov_b32 v{t1}, 0x3f80')
    a(f'v_lshlrev_b32 v{t2}, v{t0}, v{t1}')
    a(f'v_lshrrev_b32 v{t0}, 1, v{n}')
    for x in range(4):
        a(f'v_cmp_eq_u32 vcc, {x}, v{t0}')
        a(f'v_cndmask_b32 v{SEL + x}, 0, v{t2}, vcc')


def mf32(d, a_, b, c):
    return f'v_mfma_f32_16x16x32_bf16 {v(d, 4)}, {a_}, {b}, {v(c, 4) if c is not None else 0}'


def wait_flag(a, lbl, vaddr, soff, imm, need, sleep, mask28=False):
    a(f's_mov_b32 s{sTRY}, 0')
    a(f'{lbl}:')
    a(f'buffer_load_dword v{T}, v{vaddr}, {WS}, s{soff} offen offset:{imm} sc1')
    a(f's_add_u32 s{sTRY}, s{sTRY}, 1')
    a(f's_cmp_gt_u32 s{sTRY}, {MAXTRY}')
    a('s_cbranch_scc1 L_fail')
    a('s_waitcnt vmcnt(0)')
    a(f'v_cmp_gt_u32 vcc, s{need}, v{T}')
    if mask28:
        a('s_and_b32 vcc_lo, vcc_lo, 0x0fffffff')
        a('s_mov_b32 vcc_hi, 0')
        a('s_cmp_eq_u32 vcc_lo, 0')
        a(f's_cbranch_scc1 {lbl}_ok')
    else:
        a(f's_cbranch_vccz {lbl}_ok')
    if sleep:
        a(f's_sleep {sleep}')
    a(f's_branch {lbl}')
    a(f'{lbl}_ok:')


def set_flag(a, hop, fl):
    a('s_waitcnt vmcnt(0)')
    a(f'v_mov_b32 v{T}, s{sIT}')
    a(f'buffer_store_dword v{T}, v{vOne}, {WS}, s{sFW} offen offset:{hop * 512} {fl}')


def group4(a, op, x, tmp):
    a(f'v_mov_b32 v{tmp}, v{x}')
    a(f'v_permlane16_swap_b32 v{x}, v{tmp}')
    a(f'{op} v{x}, v{x}, v{tmp}')
    a(f'v_mov_b32 v{tmp}, v{x}')
    a(f'v_permlane32_swap_b32 v{x}, v{tmp}')
    a(f'{op} v{x}, v{x}, v{tmp}')


def row16_sum(a, x):
    for sh in (8, 4, 2, 1):
        a(f'v_add_f32_dpp v{x}, v{x}, v{x} row_ror:{sh} row_mask:0xf bank_mask:0xf')


def project(a, wfn, nk, bfn, soff, fl):
    a(f's_add_u32 s{sT}, s{soff}, {16 * CP_R}')
    pend = []
    for aa in range(4):
        for t in range(2):
            for c2 in range(2):
                ct = 2 * aa + c2
                d = ACC + 16 * aa + 8 * t + 4 * c2
                for k in range(nk):
                    a(mf32(d, wfn(ct, k), bfn(t, k), d if k else None))
                    if pend and not (pend[0].startswith('v_') and False):
                        a(pend.pop(0))
            d = ACC + 16 * aa + 8 * t
            for x in pend:
                a(x)
            pend = ['s_nop 0'] * (1 if nk > 2 else 0)
            pend += [f'v_cvt_pk_bf16_f32 v{d + k}, v{d + 2 * k}, v{d + 2 * k + 1}' for k in range(4)]
            pend += [f'buffer_store_dwordx4 {v(d, 4)}, v{vPst}, {WS}, s{sT if t else soff} offen offset:{64 * aa} {fl}']
    for x in pend:
        a(x)


def gather(a, soff, nld):
    for i in range(nld):
        if i:
            a(f's_add_u32 s{sT}, s{soff}, {4096 * i}')
        a(f'buffer_load_dwordx4 {v(RED + 4 * i, 4)}, v{vRld}, {WS}, s{sT if i else soff} offen sc1')
    for i in range(nld):
        a(f's_waitcnt vmcnt({nld - 1 - i})')
        a(mf32(RD, v(SEL, 4), v(RED + 4 * i, 4), RD if i else None))


def c_main(a, exit_label, fl='', sfx=''):
    a(f'C_loop{sfx}:')
    a(f's_add_u32 s{sIT}, s{sIT}, 1')
    a(f's_lshr_b32 s{sNEED}, s{sSEG}, 1')
    a(f's_add_u32 s{sNEED}, s{sNEED}, 1')
    a(f's_and_b32 s{sT}, s{sSEG}, 1')
    a(f's_lshl_b32 s{sT}, s{sT}, 12')
    a(f's_add_u32 s{sT + 1}, s{sT}, s{sFP}')
    wait_flag(a, f'C_wp{sfx}', vF4, sT + 1, 0, sNEED, 4)
    a(f's_and_b32 s{sT}, s{S_W}, 1')
    a(f's_lshl_b32 s{sT}, s{sT}, 12')
    a(f's_add_u32 s{sT}, s{sT}, s{sQKV}')
    a(f's_add_u32 s{sT}, s{sT}, 16384')
    for j in range(4):
        a(f'buffer_load_dwordx4 {v(Q + 4 * j, 4)}, v{vA}, {WS}, s{sT} offen offset:{j * 1024} sc1')
    for hh in range(2):
        for j in range(4):
            a(f'buffer_load_dwordx4 {v(K + 16 * hh + 4 * j, 4)}, v{vKld}, {WS}, s{sQKV} offen offset:{hh * 128 + j * 1024} sc1')
    a(f's_lshr_b32 s{sT}, s{S_W}, 1')
    a(f's_lshl_b32 s{sT}, s{sT}, 12')
    a(f's_add_u32 s{sT}, s{sT}, s{sQKV}')
    a(f's_add_u32 s{sT}, s{sT}, 8192')
    for i in range(4):
        a(f'buffer_load_dwordx4 {v(V + 4 * i, 4)}, v{vA}, {WS}, s{sT} offen offset:{i * 1024} sc1')
    a(f'buffer_load_dwordx2 {v(HP, 2)}, v{vRow}, s[{S_X}:{S_X + 3}], s{sROW} offen')
    for hh in range(2):
        for j in range(4):
            a(f's_waitcnt vmcnt({12 - 4 * hh - j})')
            a(mf32(S + 4 * hh, v(K + 16 * hh + 4 * j, 4), v(Q + 4 * j, 4), S + 4 * hh if j else None))
    a('s_waitcnt vmcnt(1)')
    for wv in range(2):
        b = V + 8 * wv
        a(f'v_swap_b32 v{b + 1}, v{b + 2}')
        a(f'v_swap_b32 v{b + 5}, v{b + 6}')
        a(f'v_swap_b32 v{b + 2}, v{b + 4}')
        a(f'v_swap_b32 v{b + 3}, v{b + 5}')
    for r in range(8):
        a(f'v_fma_f32 v{S + r}, v{S + r}, s{sC0}, v{BIAS + r}')
    a(f'v_max3_f32 v{TT}, v{S}, v{S + 1}, v{S + 2}')
    a(f'v_max3_f32 v{TT + 1}, v{S + 3}, v{S + 4}, v{S + 5}')
    a(f'v_max3_f32 v{TT}, v{TT}, v{S + 6}, v{S + 7}')
    a(f'v_max_f32 v{TT}, v{TT}, v{TT + 1}')
    a(f's_add_u32 s{sNEED}, s{sSEG}, 1')
    wait_flag(a, f'C_wr{sfx}', vF4, sFRR, 0, sNEED, 2)
    a(f's_lshl_b32 s{sT}, s{S_W}, 12')
    a(f's_add_u32 m0, s{sT}, {L_KVM}')
    for i in range(4):
        a(f'buffer_load_dwordx4 v{vA}, {WS}, s{sKVM} offen offset:{i * 1024} sc1 lds')
    a('s_waitcnt vmcnt(0)')
    for j in range(4):
        for hi in range(2):
            a(f'ds_read_b64_tr_b16 {v(KM + 4 * j + 2 * hi, 2)}, v{vKtr} offset:{L_KVM + j * 1024 + hi * 512}')
    for i in range(4):
        a(f'ds_read_b64 {v(VM + 2 * i, 2)}, v{vVm} offset:{L_KVM + (i >> 1) * 1024 + (i & 1) * 512}')
    for j in range(4):
        a(f's_waitcnt lgkmcnt({10 - 2 * j})')
        a(mf32(S + 8, v(KM + 4 * j, 4), v(Q + 4 * j, 4), S + 8 if j else None))
    for r in range(4):
        a(f'v_fma_f32 v{S + 8 + r}, v{S + 8 + r}, s{sC0}, v{MMASK}')
    a(f'v_max3_f32 v{TT + 1}, v{S + 8}, v{S + 9}, v{S + 10}')
    a(f'v_max3_f32 v{TT}, v{TT}, v{TT + 1}, v{S + 11}')
    group4(a, 'v_max_f32', TT, TT + 1)
    for r in range(0, 12, 2):
        a(f'v_pk_add_f32 {v(S + r, 2)}, {v(S + r, 2)}, {v(TT, 2)} op_sel_hi:[1,0] neg_lo:[0,1] neg_hi:[0,1]')
    for r in range(12):
        a(f'v_exp_f32 v{S + r}, v{S + r}')
    for r in range(6):
        a(f'v_cvt_pk_bf16_f32 v{PP + r}, v{S + 2 * r}, v{S + 2 * r + 1}')
    a('s_waitcnt lgkmcnt(0)')
    zs = [f'v_add_f32 v{S + r}, v{S + r}, v{S + r + 6}' for r in range(6)]
    zs += [f'v_add_f32 v{S + r}, v{S + r}, v{S + r + 3}' for r in range(3)]
    zs += [f'v_add_f32 v{S}, v{S}, v{S + 1}', f'v_add_f32 v{S}, v{S}, v{S + 2}']
    for i in range(4):
        a(mf32(OT + 4 * i, v(V + 4 * i, 4), v(PP, 4), None))
        a(zs.pop(0)); a(zs.pop(0))
    for i in range(4):
        a(f'v_mfma_f32_16x16x16_bf16 {v(OT + 4 * i, 4)}, {v(VM + 2 * i, 2)}, {v(PP + 4, 2)}, {v(OT + 4 * i, 4)}')
        if zs:
            a(zs.pop(0))
    group4(a, 'v_add_f32', S, TT)
    a(f'v_rcp_f32 v{TT}, v{S}')
    for r in range(0, 16, 2):
        a(f'v_pk_mul_f32 {v(OT + r, 2)}, {v(OT + r, 2)}, {v(TT, 2)} op_sel_hi:[1,0]')
    for r in range(8):
        a(f'v_cvt_pk_bf16_f32 v{OT + r}, v{OT + 2 * r}, v{OT + 2 * r + 1}')
    a(f'ds_write_b128 v{vOw}, {v(OT, 4)} offset:{L_O}')
    a(f'ds_write_b128 v{vOw}, {v(OT + 4, 4)} offset:{L_O + 1024}')
    a('s_waitcnt lgkmcnt(0)')
    a('s_barrier')
    for i in range(8):
        a(f'ds_read_b128 {v(OB + 4 * i, 4)}, v{vA} offset:{L_O + i * 1024}')
    a('s_waitcnt lgkmcnt(0)')
    project(a, lambda ct, k: ac(16 * ct + 4 * k, 4), 4, lambda t, k: v(OB + 16 * t + 4 * k, 4), sP1W, fl)
    set_flag(a, 0, fl)
    wait_flag(a, f'C_w1{sfx}', vFl, sFR, 0, sIT, 0)
    gather(a, sP1R, 8)
    a(f'v_lshlrev_b32 v{XR}, 16, v{HP}')
    a(f'v_and_b32 v{XR + 1}, 0xffff0000, v{HP}')
    a(f'v_lshlrev_b32 v{XR + 2}, 16, v{HP + 1}')
    a(f'v_and_b32 v{XR + 3}, 0xffff0000, v{HP + 1}')

    def round_add(dst):
        a(f'v_cvt_pk_bf16_f32 v{RD}, v{RD}, v{RD + 1}')
        a(f'v_cvt_pk_bf16_f32 v{RD + 2}, v{RD + 2}, v{RD + 3}')
        a(f'v_and_b32 v{RD + 1}, 0xffff0000, v{RD}')
        a(f'v_and_b32 v{RD + 3}, 0xffff0000, v{RD + 2}')
        a(f'v_lshlrev_b32 v{RD}, 16, v{RD}')
        a(f'v_lshlrev_b32 v{RD + 2}, 16, v{RD + 2}')
        a(f'v_pk_add_f32 {v(XR, 2)}, {v(XR, 2)}, {v(RD, 2)}')
        a(f'v_pk_add_f32 {v(XR + 2, 2)}, {v(XR + 2, 2)}, {v(RD + 2, 2)}')
        a(f'v_cvt_pk_bf16_f32 v{dst}, v{XR}, v{XR + 1}')
        a(f'v_cvt_pk_bf16_f32 v{dst + 1}, v{XR + 2}, v{XR + 3}')
    round_add(HP)
    a(f'v_lshlrev_b32 v{XR}, 16, v{HP}')
    a(f'v_and_b32 v{XR + 1}, 0xffff0000, v{HP}')
    a(f'v_lshlrev_b32 v{XR + 2}, 16, v{HP + 1}')
    a(f'v_and_b32 v{XR + 3}, 0xffff0000, v{HP + 1}')
    M, U = 72, 76
    a(f'v_pk_add_f32 {v(M, 2)}, {v(XR, 2)}, {v(XR + 2, 2)}')
    a(f'v_add_f32 v{M}, v{M}, v{M + 1}')
    row16_sum(a, M)
    a(f'v_mov_b32 v{M + 1}, v{M}')
    a(f'v_permlane16_swap_b32 v{M}, v{M + 1}')
    a(f'v_add_f32 v{M}, v{M}, v{M + 1}')
    a(f'v_mul_f32 v{M}, {f32(1 / 128)}, v{M}')
    a(f'v_pk_add_f32 {v(U, 2)}, {v(XR, 2)}, {v(M, 2)} op_sel_hi:[1,0] neg_lo:[0,1] neg_hi:[0,1]')
    a(f'v_pk_add_f32 {v(U + 2, 2)}, {v(XR + 2, 2)}, {v(M, 2)} op_sel_hi:[1,0] neg_lo:[0,1] neg_hi:[0,1]')
    a(f'v_pk_mul_f32 {v(U, 2)}, {v(U, 2)}, {v(U, 2)}')
    a(f'v_pk_fma_f32 {v(U, 2)}, {v(U + 2, 2)}, {v(U + 2, 2)}, {v(U, 2)}')
    a(f'v_add_f32 v{M + 1}, v{U}, v{U + 1}')
    row16_sum(a, M + 1)
    a(f'v_mov_b32 v{U}, v{M + 1}')
    a(f'v_permlane16_swap_b32 v{M + 1}, v{U}')
    a(f'v_add_f32 v{M + 1}, v{M + 1}, v{U}')
    a(f's_lshl_b32 s{sT}, s{S_W}, 3')
    a(f'v_mov_b32 v{U}, s{sT}')
    a(f'v_mov_b32 v{U + 1}, 0')
    a('s_mov_b64 exec, 1')
    a(f'ds_write_b64 v{U}, {v(M, 2)} offset:{L_ST}')
    a('s_mov_b64 exec, -1')
    a('s_waitcnt lgkmcnt(0)')
    a('s_barrier')
    a(f'ds_read_b128 v[80:83], v{U + 1} offset:{L_ST}')
    a(f'ds_read_b128 v[84:87], v{U + 1} offset:{L_ST + 16}')
    a('s_waitcnt lgkmcnt(0)')
    merge_stats(a, 80, M, 128)
    for r in (0, 2):
        a(f'v_pk_add_f32 {v(XR + r, 2)}, {v(XR + r, 2)}, {v(M, 2)} op_sel_hi:[1,0] neg_lo:[0,1] neg_hi:[0,1]')
        a(f'v_pk_mul_f32 {v(XR + r, 2)}, {v(XR + r, 2)}, {v(M, 2)} op_sel:[0,1] op_sel_hi:[1,1]')
    a(f'v_cvt_pk_bf16_f32 v{U}, v{XR}, v{XR + 1}')
    a(f'v_cvt_pk_bf16_f32 v{U + 1}, v{XR + 2}, v{XR + 3}')
    a(f'buffer_store_dwordx2 {v(U, 2)}, v{vHst}, {WS}, s{sHNW} offen {fl}')
    set_flag(a, 1, fl)
    a(f's_cmp_ge_u32 s{S_H}, 28')
    a(f's_cbranch_scc1 C_noffn{sfx}')
    wait_flag(a, f'C_w2{sfx}', vFl, sFR, 512, sIT, 0)
    a(f's_lshl_b32 s{sT + 1}, s{S_W}, 12')
    for t in range(2):
        a(f's_add_u32 m0, s{sT + 1}, {L_HN + t * 16384}')
        a(f's_add_u32 s{sT}, s{sHNR}, {t * 16384}')
        for i in range(4):
            a(f'buffer_load_dwordx4 v{vA}, {WS}, s{sT} offen offset:{i * 1024} sc1 lds')
    a('s_waitcnt vmcnt(0)')
    a('s_barrier')

    def rd(ks):
        return [f'ds_read_b128 {v(XB + 8 * (ks & 1) + 4 * t, 4)}, v{vHrd + (ks & 1)} offset:{L_HN + t * 16384 + (ks >> 1) * 2048}' for t in range(2)]
    for x in rd(0):
        a(x)
    for ks in range(16):
        nxt = rd(ks + 1) if ks < 15 else []
        a('s_waitcnt lgkmcnt(0)')
        for m in range(2):
            for t in range(2):
                d = GU + 8 * m + 4 * t
                a(mf32(d, ac(128 + 64 * m + 4 * ks, 4), v(XB + 8 * (ks & 1) + 4 * t, 4), d if ks else None))
                if nxt:
                    a(nxt.pop(0))
    c1 = 2 * math.sqrt(2 / math.pi) * 1.4426950408889634
    a(f's_mov_b32 s{sT}, {f32(-c1 * 0.044715)}')
    a(f'v_mov_b32 v{T}, {f32(-c1)}')
    for r in range(8):
        a(f'v_mul_f32 v{AT + r}, v{GU + r}, v{GU + r}')
    for r in range(8):
        a(f'v_fma_f32 v{AT + r}, v{AT + r}, s{sT}, v{T}')
    for r in range(8):
        a(f'v_mul_f32 v{AT + r}, v{AT + r}, v{GU + r}')
    for r in range(8):
        a(f'v_exp_f32 v{AT + r}, v{AT + r}')
    for r in range(8):
        a(f'v_add_f32 v{AT + r}, 1.0, v{AT + r}')
    for r in range(8):
        a(f'v_rcp_f32 v{AT + r}, v{AT + r}')
    for r in range(0, 8, 2):
        a(f'v_pk_mul_f32 {v(GU + r, 2)}, {v(GU + r, 2)}, {v(GU + 8 + r, 2)}')
    for r in range(0, 8, 2):
        a(f'v_pk_mul_f32 {v(AT + r, 2)}, {v(AT + r, 2)}, {v(GU + r, 2)}')
    for r in range(4):
        a(f'v_cvt_pk_bf16_f32 v{AT + r}, v{AT + 2 * r}, v{AT + 2 * r + 1}')
    for t in range(2):
        a(f'ds_write_b64 v{vActW}, {v(AT + 2 * t, 2)} offset:{L_ACT + t * 2048}')
    a('s_waitcnt lgkmcnt(0)')
    a('s_barrier')
    for i in range(4):
        a(f'ds_read_b128 {v(AB + 4 * i, 4)}, v{vA} offset:{L_ACT + i * 1024}')
    a(f's_add_u32 s{sNEED}, s{sP1W}, {CP_2}')
    a('s_waitcnt lgkmcnt(0)')
    project(a, lambda ct, k: v(WD + 8 * ct + 4 * k, 4), 2, lambda t, k: v(AB + 8 * t + 4 * k, 4), sNEED, fl)
    set_flag(a, 2, fl)
    a(f'C_noffn{sfx}:')
    wait_flag(a, f'C_w3{sfx}', vFl, sFR, 1024, sIT, 0, mask28=True)
    a(f's_add_u32 s{sNEED}, s{sP1R}, {CP_2}')
    gather(a, sNEED, 7)
    a(f'v_lshlrev_b32 v{XR}, 16, v{HP}')
    a(f'v_and_b32 v{XR + 1}, 0xffff0000, v{HP}')
    a(f'v_lshlrev_b32 v{XR + 2}, 16, v{HP + 1}')
    a(f'v_and_b32 v{XR + 3}, 0xffff0000, v{HP + 1}')
    round_add(72)
    a(f'buffer_store_dwordx2 v[72:73], v{vRow}, s[{S_O}:{S_O + 3}], s{sROW} offen')
    a(f's_add_u32 s{sSEG}, s{sSEG}, {NC_}')
    a(f's_add_u32 s{sQKV}, s{sQKV}, {NC_ * QKV_S}')
    a(f's_add_u32 s{sKVM}, s{sKVM}, {NC_ * KVM_S}')
    a(f's_add_u32 s{sROW}, s{sROW}, {NC_ * 32768}')
    a(f's_cmp_lt_u32 s{sSEG}, 64')
    a(f's_cbranch_scc1 C_loop{sfx}')
    a(f's_branch {exit_label}')
```

```python
from common import *
from weights import *
import struct

WS = f's[{S_WS}:{S_WS + 3}]'


def f32(x):
    return struct.unpack('<I', struct.pack('<f', x))[0]


def ln1(a, s_tile, lbl):
    srd(a, S_T, P_X, 2048 * 1024)
    X = 16
    a('v_and_b32 v1, 15, v0')
    a('v_lshrrev_b32 v2, 4, v0')
    a('v_lshlrev_b32 v3, 10, v1')
    a('v_lshl_add_u32 v3, v2, 6, v3')
    a(f's_lshl_b32 s{S_A}, s{s_tile}, 14')
    a(f's_lshl_b32 s{S_B}, s{S_W}, 8')
    a(f's_add_u32 s{S_SO}, s{S_A}, s{S_B}')
    for i in range(4):
        a(f'buffer_load_dwordx4 {v(X + 4 * i, 4)}, v3, s[{S_T}:{S_T + 3}], s{S_SO} offen offset:{16 * i}')
    F = 32
    a('s_waitcnt vmcnt(0)')
    for i in range(16):
        a(f'v_lshlrev_b32 v{F + 2 * i}, 16, v{X + i}')
        a(f'v_and_b32 v{F + 2 * i + 1}, 0xffff0000, v{X + i}')

    def lane_sum(dst, tmp):
        a(f'v_mov_b32 v{tmp}, v{dst}')
        a(f'v_permlane16_swap_b32 v{dst}, v{tmp}')
        a(f'v_add_f32 v{dst}, v{dst}, v{tmp}')
        a(f'v_mov_b32 v{tmp}, v{dst}')
        a(f'v_permlane32_swap_b32 v{dst}, v{tmp}')
        a(f'v_add_f32 v{dst}, v{dst}, v{tmp}')
    a(f'v_pk_add_f32 v[4:5], {v(F, 2)}, {v(F + 2, 2)}')
    for i in range(2, 16):
        a(f'v_pk_add_f32 v[4:5], v[4:5], {v(F + 2 * i, 2)}')
    a('v_add_f32 v4, v4, v5')
    lane_sum(4, 5)
    a(f'v_mul_f32 v4, {f32(1 / 128)}, v4')
    for i in range(16):
        a(f'v_pk_add_f32 {v(64, 2)}, {v(F + 2 * i, 2)}, v[4:5] op_sel_hi:[1,0] neg_lo:[0,1] neg_hi:[0,1]')
        if i == 0:
            a(f'v_pk_mul_f32 v[6:7], {v(64, 2)}, {v(64, 2)}')
        else:
            a(f'v_pk_fma_f32 v[6:7], {v(64, 2)}, {v(64, 2)}, v[6:7]')
    a('v_add_f32 v5, v6, v7')
    lane_sum(5, 6)
    a(f's_lshl_b32 s{S_A}, s{S_W}, 3')
    a('v_lshlrev_b32 v6, 5, v1')
    a(f'v_add_u32 v7, s{S_A}, v6')
    a('ds_write_b64 v7, v[4:5]')
    a('s_waitcnt lgkmcnt(0)')
    a('s_barrier')
    a('ds_read_b128 v[8:11], v6')
    a('ds_read_b128 v[12:15], v6 offset:16')
    a('s_waitcnt lgkmcnt(0)')
    a('s_barrier')
    merge_stats(a, 8, 4, 128)
    for i in range(16):
        a(f'v_pk_add_f32 {v(F + 2 * i, 2)}, {v(F + 2 * i, 2)}, v[4:5] op_sel_hi:[1,0] neg_lo:[0,1] neg_hi:[0,1]')
        a(f'v_pk_mul_f32 {v(F + 2 * i, 2)}, {v(F + 2 * i, 2)}, v[4:5] op_sel:[0,1] op_sel_hi:[1,1]')
    order = (0, 4, 1, 5, 2, 6, 3, 7)
    for b in range(2):
        for k in range(8):
            d = F + 16 * b + 2 * order[k]
            a(f'v_cvt_pk_bf16_f32 v{X + 8 * b + k}, v{d}, v{d + 1}')
    a('v_lshlrev_b32 v3, 4, v1')
    a('v_lshl_add_u32 v3, v2, 10, v3')
    a(f's_lshl_b32 s{S_A}, s{s_tile}, 14')
    a(f's_lshl_b32 s{S_B}, s{S_W}, 12')
    a(f's_add_u32 s{S_SO}, s{S_A}, s{S_B}')
    if XN:
        a(f's_add_u32 s{S_SO}, s{S_SO}, {XN}')
    for i in range(4):
        a(f'buffer_store_dwordx4 {v(X + 4 * i, 4)}, v3, {WS}, s{S_SO} offen offset:{256 * i} sc1')


def merge_stats(a, src, dst, n):
    m = [src + 2 * i for i in range(4)]
    a(f'v_add_f32 v{dst}, v{m[0]}, v{m[1]}')
    a(f'v_add_f32 v{dst + 1}, v{m[2]}, v{m[3]}')
    a(f'v_add_f32 v{dst}, v{dst}, v{dst + 1}')
    a(f'v_mul_f32 v{dst}, 0.25, v{dst}') if False else a(f'v_mul_f32 v{dst}, {f32(0.25)}, v{dst}')
    a(f'v_add_f32 v{src + 1}, v{src + 1}, v{src + 3}')
    a(f'v_add_f32 v{src + 5}, v{src + 5}, v{src + 7}')
    a(f'v_add_f32 v{src + 1}, v{src + 1}, v{src + 5}')
    for i in range(4):
        a(f'v_sub_f32 v{m[i]}, v{m[i]}, v{dst}')
    a(f'v_mul_f32 v{src + 3}, v{m[0]}, v{m[0]}')
    for i in range(1, 4):
        a(f'v_fma_f32 v{src + 3}, v{m[i]}, v{m[i]}, v{src + 3}')
    a(f'v_mul_f32 v{src + 3}, {f32(float(n))}, v{src + 3}')
    a(f'v_add_f32 v{src + 1}, v{src + 1}, v{src + 3}')
    a(f'v_mov_b32 v{src + 3}, {f32(1e-5)}')
    a(f'v_fmac_f32 v{src + 3}, {f32(1 / (4 * n))}, v{src + 1}')
    a(f'v_rsq_f32 v{dst + 1}, v{src + 3}')


vA, vVst, vFl = 0, 1, 2
XB = 8
ACC = 32
OUT = 80
sSEG, sXN, sOUT, sCNT, sM0, sFL = 24, 25, 26, 27, 28, 29


def p_pieces():
    ps = [QkvPiece(P_WK, q, lambda d, n: ac(128 + d, n)) for q in range(4)]
    ps += [QkvPiece(P_WV, q, lambda d, n: v(128 + d, n)) for q in range(4)]
    ps += [QkvPiece(P_WQ, q, lambda d, n: ac(d, n)) for q in range(4)]
    return ps


def p_setup(a):
    a('v_lshrrev_b32 v3, 5, v0')
    a('v_lshlrev_b32 v3, 10, v3')
    a('v_bfe_u32 v4, v0, 4, 1')
    a('v_lshl_add_u32 v3, v4, 9, v3')
    a('v_and_b32 v4, 15, v0')
    a(f'v_lshl_add_u32 v{vVst}, v4, 4, v3')
    a(f'v_cmp_eq_u32 vcc, 0, v0')
    a(f'v_mov_b32 v3, {OOB}')
    a(f'v_cndmask_b32 v{vFl}, v3, v0, vcc')
    a(f'v_lshlrev_b32 v{vA}, 4, v0')
    a(f's_lshl_b32 s{S_A}, s{S_G}, 15')
    a(f's_lshl_b32 s{S_B}, s{S_W}, 13')
    a(f's_add_u32 s{sXN}, s{S_A}, s{S_B}')
    if XN:
        a(f's_add_u32 s{sXN}, s{sXN}, {XN}')
    a(f's_mov_b32 s{sM0}, s{S_B}')
    a(f's_mul_i32 s{S_A}, s{S_G}, {QKV_S}')
    a(f's_mul_i32 s{S_B}, s{S_H}, {QKV_H}')
    a(f's_add_u32 s{S_A}, s{S_A}, s{S_B}')
    a(f's_lshl_b32 s{S_B}, s{S_W}, 10')
    a(f's_add_u32 s{S_A}, s{S_A}, s{S_B}')
    a(f's_add_u32 s{sOUT}, s{S_A}, {QKV}')
    a(f's_lshl_b32 s{S_A}, s{S_G}, 5')
    a(f's_add_u32 s{S_A}, s{S_A}, s{S_H}')
    a(f's_lshl_b32 s{S_A}, s{S_A}, 7')
    a(f's_lshl_b32 s{S_B}, s{S_W}, 2')
    a(f's_add_u32 s{S_A}, s{S_A}, s{S_B}')
    a(f's_add_u32 s{sFL}, s{S_A}, {F_P}')
    a(f's_mov_b32 s{sCNT}, 0')


def p_init_flags(a):
    a('v_mov_b32 v3, 0')
    a(f'buffer_store_dword v3, v{vFl}, {WS}, s{sFL} offen sc1')


def p_dma(a):
    o = []
    for hf in range(2):
        o.append(f's_add_u32 m0, s{sM0}, {hf * 4096}')
        o.append(f's_add_u32 s{S_SO}, s{sXN}, {hf * 4096}')
        for i in range(4):
            o.append(f'buffer_load_dwordx4 v{vA}, {WS}, s{S_SO} offen offset:{i * 1024} sc1 lds')
    o.append(f's_add_u32 s{sXN}, s{sXN}, {NP_ * 32768}')
    o.append(f's_xor_b32 s{sM0}, s{sM0}, 32768')
    return o


def p_segment(a, buf):
    def rd(ks):
        return [f'ds_read_b128 {v(XB + 8 * (ks & 1) + 4 * t, 4)}, v{vA} offset:{buf * 32768 + t * 16384 + ks * 1024}' for t in range(2)]
    a('s_waitcnt vmcnt(6)')
    a('s_barrier')
    for x in rd(0):
        a(x)
    dma = p_dma(a)
    for ks in range(16):
        c, hh = ks >> 1, ks & 1
        nxt = rd(ks + 1) if ks < 15 else []
        a(f's_waitcnt lgkmcnt(0)')
        n = 0
        for m in range(3):
            for ft in range(2):
                for t in range(2):
                    d = ACC + 16 * m + 8 * t + 4 * ft
                    x = v(XB + 8 * (ks & 1) + 4 * t, 4)
                    o = 16 * c + 8 * ft + 4 * hh
                    cc = v(d, 4) if ks else '0'
                    if m == 0:
                        a(f'v_mfma_f32_16x16x32_bf16 {v(d, 4)}, {ac(128 + o, 4)}, {x}, {cc}')
                    elif m == 1:
                        a(f'v_mfma_f32_16x16x32_bf16 {v(d, 4)}, {x}, {v(128 + o, 4)}, {cc}')
                    else:
                        a(f'v_mfma_f32_16x16x32_bf16 {v(d, 4)}, {ac(o, 4)}, {x}, {cc}')
                    n += 1
                    if n <= 2 and nxt:
                        a(nxt.pop(0))
                    elif ks == 0 and dma:
                        a(dma.pop(0))
                        if dma and not dma[0].startswith('buffer'):
                            a(dma.pop(0))
                    elif ks == 1 and dma:
                        a(dma.pop(0))
                    elif ks == 4 and n == 4:
                        a('s_waitcnt vmcnt(8)')
                        a(f'v_mov_b32 v3, s{sCNT}')
                    elif ks == 4 and n == 6:
                        a(f'buffer_store_dword v3, v{vFl}, {WS}, s{sFL} offen sc1')
        assert ks < 1 or not dma
    for t in range(2):
        for m in (0, 2):
            d = ACC + 16 * m + 8 * t
            o = OUT + 4 * (t + (2 if m else 0))
            for k in range(4):
                a(f'v_cvt_pk_bf16_f32 v{o + k}, v{d + 2 * k}, v{d + 2 * k + 1}')
        d = ACC + 16 + 8 * t
        o = OUT + 16 + 4 * t
        for k in range(4):
            s_ = d + 4 * (k & 1) + 2 * (k >> 1)
            a(f'v_cvt_pk_bf16_f32 v{o + k}, v{s_}, v{s_ + 1}')
    a(f's_add_u32 s{S_A}, s{sOUT}, 4096')
    a(f'buffer_store_dwordx4 {v(OUT, 4)}, v{vA}, {WS}, s{sOUT} offen sc1')
    a(f'buffer_store_dwordx4 {v(OUT + 4, 4)}, v{vA}, {WS}, s{S_A} offen sc1')
    a(f's_lshl_b32 s{S_B}, s{S_W}, 10')
    a(f's_add_u32 s{S_B}, s{S_B}, s{sOUT}')
    a(f's_add_u32 s{S_B}, s{S_B}, 8192')
    a(f'buffer_store_dwordx4 {v(OUT + 16, 4)}, v{vVst}, {WS}, s{S_B} offen sc1')
    a(f'buffer_store_dwordx4 {v(OUT + 20, 4)}, v{vVst}, {WS}, s{S_B} offen offset:256 sc1')
    a(f's_add_u32 s{S_A}, s{sOUT}, 16384')
    a(f's_add_u32 s{S_B}, s{sOUT}, 20480')
    a(f'buffer_store_dwordx4 {v(OUT + 8, 4)}, v{vA}, {WS}, s{S_A} offen sc1')
    a(f'buffer_store_dwordx4 {v(OUT + 12, 4)}, v{vA}, {WS}, s{S_B} offen sc1')
    a(f's_add_u32 s{sOUT}, s{sOUT}, {NP_ * QKV_S}')
    a(f's_add_u32 s{sCNT}, s{sCNT}, 1')


def p_main(a, exit_label):
    for x in p_dma(a):
        a(x)
    a('s_waitcnt vmcnt(0)')
    a('P_loop:')
    p_segment(a, 0)
    p_segment(a, 1)
    a(f's_cmp_lt_u32 s{sCNT}, {64 // NP_}')
    a('s_cbranch_scc1 P_loop')
    a('s_waitcnt vmcnt(0)')
    a(f'v_mov_b32 v3, s{sCNT}')
    a(f'buffer_store_dword v3, v{vFl}, {WS}, s{sFL} offen sc1')
    a(f's_branch {exit_label}')
```

```python
from common import *
from weights import *
import struct

L_K, L_V, L_M = 0x20000, 0x22000, 0x24000
L_X = 0x26000
X_Q, X_K, X_O = 0, 0x880, 0x1100
L_SEL = 0x27980

vA, vB, vC, vPst, vMst, vLw, vLtr, vLv, vIdx, vMask, vRld = 0, 1, 2, 3, 4, 5, 6, 7, 8, 9, 10
vPf = 7
T0, T1, T2, T3 = 12, 13, 14, 15
MA = 16
KS = 48
QB = 80
AQ, AK, AV = 96, 104, 112
PUB = 120
QP = 124
KM = 48
VS = 64
PS, PM, OP = 72, 76, 12
ONES = 124
ZA = 108
OA_ = T0
OAOP = 96
ACCO = 64
RED, SEL, RD = 24, 32, 36
XSLOT = [48, 56, 64, 72, 80, 88, 48, 56]
WOSLOT = [80, 88, 48, 56, 16, 24, 32, 40]

sSTEP, sP0, sPRD, sMRD, sMWR, sMRS, sKV, sPUB, sTAG, sTRY, sC0 = 24, 28, 32, 33, 34, 35, 36, 37, 38, 39, 40
sKVM0 = 43
sKV2 = 42
sFP, sFR, sFLV, sNEED = 92, 93, 94, 95
sONE = 26
sST = 44

WS = f's[{S_WS}:{S_WS + 3}]'
CEXP = struct.unpack('<I', struct.pack('<f', (128 ** -0.5) * 1.4426950408889634))[0]
MAXTRY = 60000
RP_R2 = 8192 + 128


def Wk(c, ft): return ac(128 + 16 * c + 8 * ft, 8)
def Wv(c, ft): return v(128 + 16 * c + 8 * ft, 8)


def smf(d, a_, b):
    return f'v_smfmac_f32_16x16x64_bf16 {v(d, 4)}, {v(a_, 4)}, {b}, v{vIdx}'


def mf32(d, a_, b, c):
    return f'v_mfma_f32_16x16x32_bf16 {v(d, 4)}, {v(a_, 4)}, {v(b, 4)}, {v(c, 4) if c is not None else 0}'


def mf16(d, a_, b, c):
    return f'v_mfma_f32_16x16x16_bf16 {v(d, 4)}, {v(a_, 2)}, {v(b, 2)}, {v(c, 4) if c is not None else 0}'


def setup(a):
    t0, t1, t2 = T0, T1, T2
    a('v_mov_b32 v15, v0')
    L = 15
    a(f'v_lshrrev_b32 v{t0}, 3, v{L}')
    a(f's_lshl_b32 s{S_A}, s{S_W}, 3')
    a(f'v_add_u32 v{t0}, s{S_A}, v{t0}')
    a(f'v_mul_u32_u24 v{t0}, {RP_R2}, v{t0}')
    a(f'v_and_b32 v{t1}, 7, v{L}')
    a(f'v_lshl_add_u32 v{t0}, v{t1}, 3, v{t0}')
    a(f's_lshl_b32 s{S_A}, s{S_H}, 6')
    a(f'v_add_u32 v{vPst}, s{S_A}, v{t0}')
    a(f'v_lshrrev_b32 v{t0}, 4, v{L}')
    a(f'v_lshlrev_b32 v{t0}, 8, v{t0}')
    a(f'v_and_b32 v{t1}, 3, v{L}')
    a(f'v_lshl_add_u32 v{t0}, v{t1}, 6, v{t0}')
    a(f'v_bfe_u32 v{t1}, v{L}, 2, 2')
    a(f'v_lshl_add_u32 v{vRld}, v{t1}, 4, v{t0}')
    a(f'v_lshrrev_b32 v{t0}, 4, v{L}')
    a(f'v_lshlrev_b32 v{t0}, 2, v{t0}')
    a(f'v_and_b32 v{t1}, 3, v{L}')
    a(f'v_lshl_add_u32 v{t0}, v{t1}, 4, v{t0}')
    a(f'v_and_b32 v{t1}, 12, v{L}')
    a(f'v_cmp_eq_u32 vcc, 0, v{t1}')
    a(f'v_mov_b32 v{t2}, {OOB}')
    a(f'v_cndmask_b32 v{vMst}, v{t2}, v{t0}, vcc')
    a(f'v_bfe_u32 v{t0}, v{L}, 4, 1')
    a(f'v_mul_u32_u24 v{t0}, 1088, v{t0}')
    a(f'v_lshrrev_b32 v{t1}, 5, v{L}')
    a(f'v_lshl_add_u32 v{t0}, v{t1}, 7, v{t0}')
    a(f'v_and_b32 v{t1}, 15, v{L}')
    a(f'v_lshl_add_u32 v{t0}, v{t1}, 3, v{t0}')
    a(f'v_add_u32 v{vLw}, {L_X}, v{t0}')
    a(f'v_and_b32 v{t0}, 1, v{L}')
    a(f'v_mul_u32_u24 v{t0}, 1088, v{t0}')
    a(f'v_lshrrev_b32 v{t1}, 2, v{L}')
    a(f'v_lshl_add_u32 v{t0}, v{t1}, 3, v{t0}')
    a(f'v_add_u32 v{vLtr}, {L_X}, v{t0}')
    a(f'v_and_b32 v{t0}, 3, v{L}')
    a(f'v_lshlrev_b32 v{vPf}, 2, v{t0}')
    a(f'v_bfe_u32 v{t0}, v{L}, 3, 1')
    a(f'v_cmp_eq_u32 vcc, 0, v{t0}')
    a(f'v_mov_b32 v{t1}, 0x44444444')
    a(f'v_mov_b32 v{t2}, 0xeeeeeeee')
    a(f'v_cndmask_b32 v{vIdx}, v{t2}, v{t1}, vcc')
    a(f'v_lshrrev_b32 v{t1}, 5, v{L}')
    a(f'v_cmp_eq_u32 vcc, v{t0}, v{t1}')
    a(f'v_mov_b32 v{t1}, 0')
    a(f'v_mov_b32 v{t2}, 0xff800000')
    a(f'v_cndmask_b32 v{vMask}, v{t2}, v{t1}, vcc')
    a(f'v_lshlrev_b32 v{vA}, 4, v15')
    a(f'v_add_u32 v{vB}, 0x10000, v{vA}')
    a(f'v_add_u32 v{vC}, 0x20000, v{vA}')
    a(f'v_and_b32 v11, 15, v{L}')
    a(f'v_and_b32 v{t0}, 1, v11')
    a(f'v_lshlrev_b32 v{t0}, 4, v{t0}')
    a(f'v_mov_b32 v{t1}, 0x3f80')
    a(f'v_lshlrev_b32 v{t2}, v{t0}, v{t1}')
    a(f'v_lshrrev_b32 v11, 1, v11')
    for x in range(4):
        a(f'v_cmp_eq_u32 vcc, {x}, v11')
        a(f'v_cndmask_b32 v{WBUF + x}, 0, v{t2}, vcc')
    a(f'ds_write_b128 v{vC}, {v(WBUF, 4)} offset:{L_SEL - 0x20000}')
    a(f's_mov_b32 s{sSTEP}, 0')
    for j in range(4):
        a(f's_mov_b32 s{sP0 + j}, {RPART + j * 2048}')
    a(f's_mul_i32 s{S_A}, s{S_H}, {RP_R2}')
    a(f's_lshl_b32 s{S_B}, s{S_W}, 11')
    a(f's_add_u32 s{S_A}, s{S_A}, s{S_B}')
    a(f's_add_u32 s{sPRD}, s{S_A}, {RPART}')
    a(f's_lshl_b32 s{S_A}, s{S_W}, 11')
    a(f's_add_u32 s{sMRD}, s{S_A}, {RM + RM_SLOT}')
    a(f's_lshr_b32 s{S_B}, s{S_H}, 2')
    a(f's_lshl_b32 s{S_B}, s{S_B}, 8')
    a(f's_add_u32 s{S_A}, s{S_A}, s{S_B}')
    a(f's_and_b32 s{S_B}, s{S_H}, 1')
    a(f's_lshl_b32 s{S_B}, s{S_B}, 7')
    a(f's_add_u32 s{S_A}, s{S_A}, s{S_B}')
    a(f's_and_b32 s{S_B}, s{S_H}, 2')
    a(f's_lshl_b32 s{S_B}, s{S_B}, 5')
    a(f's_add_u32 s{S_A}, s{S_A}, s{S_B}')
    a(f's_add_u32 s{sMWR}, s{S_A}, {RM + RM_SLOT}')
    a(f's_add_u32 s{sMRS}, s{S_A}, {RM}')
    a(f's_mul_i32 s{S_A}, s{S_H}, {QKV_H}')
    a(f's_lshl_b32 s{S_B}, s{S_W}, 11')
    a(f's_add_u32 s{S_A}, s{S_A}, s{S_B}')
    a(f's_add_u32 s{sKV}, s{S_A}, {QKV}')
    a(f's_add_u32 s{sKV2}, s{S_A}, {QKV + 8192}')
    a(f's_add_u32 s{sKVM0}, s{S_B}, {L_K}')
    a(f's_lshl_b32 s{S_A}, s{S_H}, 12')
    a(f's_lshl_b32 s{S_B}, s{S_W}, 10')
    a(f's_add_u32 s{S_A}, s{S_A}, s{S_B}')
    a(f's_add_u32 s{sPUB}, s{S_A}, {KVM - KVM_S}')
    a(f's_lshl_b32 s{S_A}, s{S_H}, 7')
    a(f's_add_u32 s{sFP}, s{S_A}, {F_P}')
    a(f's_lshl_b32 s{S_B}, s{S_W}, 2')
    a(f's_add_u32 s{S_A}, s{S_A}, s{S_B}')
    a(f's_add_u32 s{sFR}, s{S_A}, {F_R}')
    a(f's_mov_b32 s{sFLV}, 0')
    a(f's_mov_b32 s{sTAG}, 0')
    a(f's_mov_b32 s{sC0}, {CEXP}')
    a(f's_mov_b32 s{sC0 + 1}, {CEXP}')
    a(f's_mov_b32 s{sONE}, 0x3f803f80')
    a(f's_mov_b32 s{sONE + 1}, 0x3f803f80')


def init_comm(a, fl=''):
    for r in range(4):
        a(f'v_mov_b32 v{T0 + r}, -1')
    for s in range(2):
        a(f's_add_u32 s{S_A}, s{sPRD}, {s * RP_SLOT}')
        for i in range(2):
            a(f'buffer_store_dwordx4 {v(T0, 4)}, v{vA}, {WS}, s{S_A} offen offset:{i * 1024} {fl}')
    a(f'buffer_store_dword v{T0}, v{vMst}, {WS}, s{sMWR} offen {fl}')
    a(f'buffer_store_dword v{T0}, v{vMst}, {WS}, s{sMRS} offen {fl}')
    a(f'v_mov_b32 v11, 0')
    a(f'buffer_store_dword v11, off, {WS}, s{sFR} sc1')


def spin_flag(a, lbl, soff):
    a(f's_mov_b32 s{sTRY}, 0')
    a(f'{lbl}:')
    a(f'buffer_load_dword v11, v{vPf}, {WS}, s{soff} offen sc1')
    a(f's_add_u32 s{sTRY}, s{sTRY}, 1')
    a(f's_cmp_gt_u32 s{sTRY}, 400000')
    a('s_cbranch_scc1 L_fail')
    a('s_waitcnt vmcnt(0)')
    a(f'v_cmp_gt_u32 vcc, s{sNEED}, v11')
    a(f's_cbranch_vccnz {lbl}')


def dma_k():
    return [f'buffer_load_dwordx4 v{vA}, {WS}, s{sKV} offen offset:{i * 1024} sc1 lds' for i in range(2)]


def dma_v():
    return [f'buffer_load_dwordx4 v{vA}, {WS}, s{sKV2} offen offset:{i * 1024} sc1 lds' for i in range(2)]


def first_kv(a, flags=True, sfx=''):
    if flags:
        a(f's_mov_b32 s{sNEED}, 1')
        spin_flag(a, f'R_f0{sfx}', sFP)
    a(f's_mov_b32 m0, s{sKVM0}')
    for x in dma_k():
        a(x)
    a(f's_add_u32 m0, s{sKVM0}, 8192')
    for x in dma_v():
        a(x)
    if flags:
        a(f's_add_u32 s{S_A}, s{sFP}, 4096')
        spin_flag(a, f'R_f1{sfx}', S_A)


def zeros(base, n):
    return [f'v_mov_b64 {v(r, 2)}, 0' for r in range(base, base + n, 2)]


def post(acc, dst):
    o = [f'v_permlane32_swap_b32 v{acc + r}, v{acc + 4 + r}' for r in range(4)]
    o += [f'v_add_f32 v{acc + r}, v{acc + r}, v{acc + 4 + r}' for r in range(4)]
    o += [f'v_cvt_pk_bf16_f32 v{dst}, v{acc}, v{acc + 1}',
          f'v_cvt_pk_bf16_f32 v{dst + 1}, v{acc + 2}, v{acc + 3}']
    return o


def trs(dst, region):
    return [f'ds_read_b64_tr_b16 {v(dst + 4 * j + 2 * hf, 2)}, v{vLtr} offset:{region + j * 256 + hf * 128}'
            for j in range(4) for hf in range(2)]


def chunk_order(w):
    own = [2 * w, 2 * w + 1]
    rest = [c for c in (4, 5, 6, 0, 1, 2, 3, 7) if c not in own] if w < 3 else [4, 0, 1, 2, 3, 5]
    return own, rest


def xslots(w):
    own, rest = chunk_order(w)
    m = {}
    for c in own + rest:
        if c >= 4:
            for ft in range(2):
                m[(c, ft)] = XSLOT[len(m)]
    return m


def wq_preload(w):
    o = []
    for (c, ft), base in xslots(w).items():
        for hh in range(2):
            off = ((c - 4) >> 1) * 32768 + w * 8192 + (4 * (c & 1) + 2 * ft + hh) * 1024
            o.append(f'ds_read_b128 {v(base + 4 * hh, 4)}, v{vA} offset:{off}')
    return o


def wo_preload(w):
    o = []
    for j in range(4):
        for kk in (2, 3):
            base = WOSLOT[2 * j + kk - 2]
            for hh in range(2):
                o.append(f'ds_read_b128 {v(base + 4 * hh, 4)}, v{vB} offset:{(kk - 2) * 32768 + w * 8192 + (2 * j + hh) * 1024}')
    return o


def Wo(j, kk):
    return ac(64 + 32 * kk + 8 * j, 8) if kk < 2 else v(WOSLOT[2 * j + kk - 2], 8)


def main_loop(a, w, prof=None, nsteps=64, exit_label='L_exit', opt={}, fl='', sfx=''):
    P = f'R{w}{sfx}_'
    nst = [0]

    def stamp(k):
        if prof and k in prof:
            a(f's_memtime s[{sST + 2 * nst[0]}:{sST + 2 * nst[0] + 1}]')
            nst[0] += 1

    own, oth = chunk_order(w)
    xs = xslots(w)

    def Wq(c, ft):
        return ac(16 * c + 8 * ft, 8) if c < 4 else v(xs[(c, ft)], 8)

    a(f'{P}top:')
    stamp(0)
    mw = [f'ds_write_b128 v{vC}, {v(MA + 4 * c, 4)} offset:{L_M - 0x20000 + c * 1024}' for c in own]
    qo = [smf(AQ + 4 * ft, MA + 4 * c, Wq(c, ft)) for c in own for ft in range(2)]
    ko = [smf(AK + 4 * ft, MA + 4 * c, Wk(c, ft)) for c in own for ft in range(2)]
    vs = [smf(AV + 4 * ft, MA + 4 * c, Wv(c, ft)) for c in own + oth for ft in range(2)]
    a(qo[0]); a(mw[0])
    a(qo[1]); a(mw[1])
    a(qo[2]); a(qo[3])
    pub = f'buffer_store_dwordx4 {v(PUB, 4)}, v{vA}, {WS}, s{sPUB} offen sc1'
    nb = opt.get('nb', 3)
    for x in ko[:nb]:
        a(x)
    a('s_waitcnt lgkmcnt(0)')
    a('s_barrier')
    stamp(1)
    rd = [f'ds_read_b128 {v(MA + 4 * c, 4)}, v{vC} offset:{L_M - 0x20000 + c * 1024}' for c in oth]
    nv0 = opt.get('nv0', 3)
    gap = ko[nb:] + vs[:nv0]
    vs = vs[nv0:]
    krd = [f'ds_read_b128 {v(KS + 4 * i, 4)}, v{vC} offset:{L_K - 0x20000 + i * 1024}' for i in range(8)]
    x8 = wq_preload(w)[12:]
    queue = [(r, 0) for r in rd] + [(x, 1 + i // 2) for i, x in enumerate(x8)] + [(krd[i], i // 2 + 1) for i in range(4, 8)] + [(krd[i], 7 + i // 2) for i in range(4)]
    used = sum(1 for c in own if c >= 4) * 2
    issued, pos = 0, {}

    def lds_slot():
        nonlocal issued
        if queue and queue[0][1] <= used:
            x = queue.pop(0)[0]
            a(x); issued += 1; pos[x] = issued
    lds_slot()
    for x in gap:
        a(x); lds_slot()
    last_x = list(xs.keys())[-2:]
    for i, c in enumerate(oth):
        while rd[i] not in pos:
            lds_slot()
        a(f's_waitcnt lgkmcnt({issued - pos[rd[i]]})')
        for ft in range(2):
            if (c, ft) in last_x:
                a(f's_waitcnt lgkmcnt({issued - pos[x8[1 + 2 * last_x.index((c, ft))]]})')
            a(smf(AQ + 4 * ft, MA + 4 * c, Wq(c, ft)))
            if c >= 4:
                used += 1
            lds_slot()
    stamp(2)
    ks = [smf(AK + 4 * ft, MA + 4 * c, Wk(c, ft)) for c in oth for ft in range(2)]
    qp = post(AQ, QP)
    a(ks[0]); lds_slot(); a('s_nop 1')
    a(ks[1]); lds_slot(); a('s_nop 1')
    a(ks[2]); lds_slot(); a(qp[0]); a(qp[1])
    assert not queue, queue
    a(ks[3]); a(qp[2]); a(qp[3])
    a(ks[4]); a(qp[4]); a(qp[5])
    a(ks[5]); a(qp[6]); a(qp[7])
    a(ks[6]); a(qp[8]); a(qp[9])
    a(ks[7]); a(f'ds_write_b64 v{vLw}, {v(QP, 2)} offset:{X_Q + w * 256}')
    a(ks[8]); a(pub); a(f'v_mov_b32 v{T3}, s{sFLV}')
    a(ks[9]); a(f'buffer_store_dword v{T3}, off, {WS}, s{sFR} sc1')
    a(f's_add_u32 s{sPUB}, s{sPUB}, {KVM_S}')
    a(ks[10]); a(f'buffer_load_dword v11, v{vPf}, {WS}, s{sFP} offen sc1')
    a(f's_mov_b32 s{sFLV}, s{sSTEP}')
    a('s_waitcnt lgkmcnt(0)')
    a('s_barrier')
    stamp(3)
    qt = trs(QB, X_Q)
    kp = post(AK, PUB)
    a(ks[11]); a(qt[0]); a(qt[1])
    a(vs.pop(0)); a(qt[2]); a(qt[3])
    a(vs.pop(0)); a(qt[4]); a(qt[5]); a(qt[6]); a(qt[7])
    for x in kp:
        a(x)
    a('s_waitcnt lgkmcnt(6)')
    a(mf32(AQ, KS, QB, None))
    a(f'ds_write_b64 v{vLw}, {v(PUB, 2)} offset:{X_K + w * 256}')
    a('s_waitcnt lgkmcnt(1)')
    a(mf32(AQ, KS + 4, QB + 4, AQ))
    a(mf32(AQ, KS + 8, QB + 8, AQ))
    a(mf32(AQ, KS + 12, QB + 12, AQ))
    a(mf32(AQ + 4, KS + 16, QB, None))
    a(f's_add_u32 s{sKV}, s{sKV}, {QKV_S}')
    a(f's_mov_b32 m0, s{sKVM0}')
    a('s_waitcnt lgkmcnt(0)')
    a('s_barrier')
    stamp(4)
    kt = trs(KM, X_K)
    vrd = [f'ds_read_b128 {v(VS + 4 * hh, 4)}, v{vC} offset:{L_V - 0x20000 + w * 2048 + hh * 1024}' for hh in range(2)]
    a(mf32(AQ + 4, KS + 20, QB + 4, AQ + 4)); a(kt[0]); a(kt[1])
    a(mf32(AQ + 4, KS + 24, QB + 8, AQ + 4)); a(kt[2]); a(kt[3])
    a(mf32(AQ + 4, KS + 28, QB + 12, AQ + 4)); a(kt[4]); a(kt[5])
    a(vs.pop(0)); a(kt[6]); a(kt[7])
    mx = [f'v_max3_f32 v{T0}, v{AQ}, v{AQ + 1}, v{AQ + 2}',
          f'v_mov_b64 {v(ONES, 2)}, s[{sONE}:{sONE + 1}]',
          f'v_max3_f32 v{T1}, v{AQ + 3}, v{AQ + 4}, v{AQ + 5}',
          f'v_max3_f32 v{T0}, v{T0}, v{AQ + 6}, v{AQ + 7}',
          f'v_max_f32 v{T0}, v{T0}, v{T1}',
          f'v_mov_b32 v{T1}, v{T0}']
    a('s_waitcnt lgkmcnt(6)')
    a(mf32(AK, KM, QB, None)); a(vrd[0]); a(mx[0])
    a('s_waitcnt lgkmcnt(5)')
    a(mf32(AK, KM + 4, QB + 4, AK)); a(vrd[1]); a(mx[1])
    a('s_waitcnt lgkmcnt(4)')
    dk = dma_k() if not opt.get('nodma') else ['s_nop 0'] * 2
    dv = dma_v() if not opt.get('nodma') else ['s_nop 0'] * 2
    a(mf32(AK, KM + 8, QB + 8, AK)); a(dk[0]); a(mx[2]); a(mx[3])
    a('s_waitcnt lgkmcnt(2)')
    a(mf32(AK, KM + 12, QB + 12, AK)); a(dk[1]); a(mx[4]); a(mx[5])
    stamp(5)
    wr = wo_preload(w)
    a(vs.pop(0)); a(wr.pop(0)); a(f'v_permlane32_swap_b32 v{T0}, v{T1}')
    a(vs.pop(0)); a(wr.pop(0)); a(f'v_max_f32 v{T0}, v{T0}, v{T1}')
    a(f'v_max3_f32 v{T1}, v{AK}, v{AK + 1}, v{AK + 2}')
    a(f'v_max3_f32 v{T0}, v{T0}, v{T1}, v{AK + 3}')
    a(f'v_mov_b32 v{T1}, v{T0}')
    a(vs.pop(0)); a(wr.pop(0))
    a(f'v_permlane16_swap_b32 v{T0}, v{T1}')
    a(f'v_max_f32 v{T0}, v{T0}, v{T1}')
    a(f'v_mul_f32 v{T0}, s{sC0}, v{T0}')
    a(f'v_sub_f32 v{T2}, v{vMask}, v{T0}')
    fm = [f'v_pk_fma_f32 {v(AQ + r, 2)}, {v(AQ + r, 2)}, s[{sC0}:{sC0 + 1}], {v(T0, 2)} op_sel_hi:[1,1,0] neg_lo:[0,0,1] neg_hi:[0,0,1]'
          for r in range(0, 8, 2)]
    fm += [f'v_pk_fma_f32 {v(AK + r, 2)}, {v(AK + r, 2)}, s[{sC0}:{sC0 + 1}], {v(T2, 2)} op_sel_hi:[1,1,0]' for r in range(0, 4, 2)]
    ex = [f'v_exp_f32 v{AQ + r}, v{AQ + r}' for r in range(8)] + [f'v_exp_f32 v{AK + r}, v{AK + r}' for r in range(4)]
    cv = [f'v_cvt_pk_bf16_f32 v{PS + r}, v{AQ + 2 * r}, v{AQ + 2 * r + 1}' for r in range(4)]
    cv += [f'v_cvt_pk_bf16_f32 v{PM}, v{AK}, v{AK + 1}', f'v_cvt_pk_bf16_f32 v{PM + 1}, v{AK + 2}, v{AK + 3}']
    zo = zeros(OA_, 4)
    for x in fm:
        a(x)
    stamp(6)
    ne = 0
    while vs:
        a(vs.pop(0))
        if len(wr) > 8:
            a(wr.pop(0))
            if len(wr) == 8:
                a(f's_add_u32 m0, s{sKVM0}, 8192')
                a(f's_add_u32 s{sKV2}, s{sKV2}, {QKV_S}')
                a('s_waitcnt lgkmcnt(8)')
        elif dv:
            a(dv.pop(0))
        a(ex[ne]); ne += 1
    assert len(wr) == 8 and ne <= 8 and not dv
    for x in ex[ne:8]:
        a(x)
    a(zo[0]); a(zo[1])
    a(f'v_mov_b64 {v(ONES + 2, 2)}, s[{sONE}:{sONE + 1}]')
    a(cv[0]); a(cv[1]); a(cv[2]); a(cv[3])
    a(ex[8]); a(ex[9])
    vp = post(AV, PUB + 2)
    a(mf32(ZA, PS, ONES, None)); a(ex[10])
    a(smf(OA_, PS, v(VS, 8))); a(ex[11])
    a(vp[0]); a(cv[4]); a(cv[5]); a(vp[1])
    a(f's_add_u32 s{sSTEP}, s{sSTEP}, 1')
    a(mf16(ZA, PM, ONES, ZA))
    for x in vp[2:]:
        a(x)
    a(f's_cmp_eq_u32 s{sSTEP}, {nsteps}')
    a(f's_cbranch_scc1 {P}last')
    a(mf16(OA_, PM, PUB + 2, OA_))
    stamp(7)
    for r in range(4):
        a(f'v_rcp_f32 v{ZA + r}, v{ZA + r}')
    zc = zeros(ACCO, 16)
    a(zc.pop(0)); a(zc.pop(0)); a(zc.pop(0)); a(zc.pop(0))
    a(f'v_pk_mul_f32 {v(OA_, 2)}, {v(OA_, 2)}, {v(ZA, 2)}')
    a(f'v_pk_mul_f32 {v(OA_ + 2, 2)}, {v(OA_ + 2, 2)}, {v(ZA + 2, 2)}')
    a(f'v_cvt_pk_bf16_f32 v{OP}, v{OA_}, v{OA_ + 1}')
    a(f'v_cvt_pk_bf16_f32 v{OP + 1}, v{OA_ + 2}, v{OA_ + 3}')
    a(f'ds_write_b64 v{vLw}, {v(OP, 2)} offset:{X_O + w * 256}')
    for z in zc:
        a(z)
    a('s_waitcnt lgkmcnt(0)')
    a('s_barrier')
    stamp(8)
    for t in trs(OAOP, X_O):
        a(t)

    def pk(j):
        b = ACCO + 4 * j
        return [f'v_cvt_pk_bf16_f32 v{b}, v{b}, v{b + 1}',
                f'v_cvt_pk_bf16_f32 v{b + 1}, v{b + 2}, v{b + 3}',
                f'v_and_or_b32 v{b}, v{b}, -2, s{sTAG}',
                f'buffer_store_dwordx2 {v(b, 2)}, v{vPst}, {WS}, s{sP0 + j} offen {fl}']
    issued = 8
    for j in range(4):
        p = pk(j - 1) if j else None
        for kk in range(4):
            if j == 0:
                a(f's_waitcnt lgkmcnt({issued - 2 * kk - 2})')
            elif j >= 2 and kk >= 2:
                a(f's_waitcnt lgkmcnt({issued - 8 - 2 * (2 * (j - 2) + kk - 1)})')
            a(smf(ACCO + 4 * j, OAOP + 4 * kk, Wo(j, kk)))
            n = 0
            if wr:
                a(wr.pop(0)); issued += 1; n = 1
            if p:
                if kk < 2:
                    a(f's_nop {2 - n}')
                elif kk == 2:
                    a(p[0]); a(p[1])
                else:
                    a(p[2])
            if j >= 2 and kk == 0:
                pass
        if p:
            pend = p[3]
            a(pend)
    a(f's_mov_b32 s{sTRY}, 0')
    a(f'ds_read_b128 {v(SEL, 4)}, v{vC} offset:{L_SEL - 0x20000}')
    za = zeros(AQ, 24)
    for z in za[:5]:
        a(z)
    for x in pk(3):
        a(x)
    stamp(9)
    fill = za[5:] + wq_preload(w)[:12]
    n1 = opt.get('d1', (0, 0, 3, 6))[w]
    for x in fill[:n1]:
        a(x)
    fill = fill[n1:]
    for i in range(opt.get('x1', (0, 0, 0, 0))[w]):
        a(f'v_mov_b32 v{T2}, 0')
    ld = [f'buffer_load_dwordx4 {v(RED + 4 * i, 4)}, v{vRld}, {WS}, s{sPRD} offen offset:{i * 1024} sc1' for i in range(2)]
    a(ld[0]); a(ld[1])
    n2 = opt.get('f1', (11, 11, 8, 5))[w]
    for x in fill[:n2]:
        a(x)
    fill = fill[n2:]
    nlds = sum(1 for x in (za[5:] + wq_preload(w)[:12])[:n1 + n2] if x.startswith('ds_'))
    a(f's_waitcnt lgkmcnt({min(nlds, 15)})')
    def h1check(n):
        a(f's_waitcnt vmcnt({n + 1})')
        a(mf32(RD, RED, SEL, None))
        a(f'v_bitop3_b32 v{T0}, v{RED}, v{RED + 2}, s{sTAG} bitop3:0x7e')
        a(f's_waitcnt vmcnt({n})')
        a(mf32(RD, RED + 4, SEL, RD))
        a(f'v_bitop3_b32 v{T1}, v{RED + 4}, v{RED + 6}, s{sTAG} bitop3:0x7e')
        a(f'v_bitop3_b32 v{T0}, v{T0}, v{T1}, 1 bitop3:0xa8')
        a(f'v_cmp_ne_u32 vcc, 0, v{T0}')
        a(f'v_mov_b32 v{T3}, -1')
    h1check(0)
    a(f's_cbranch_vccnz {P}h1')
    a(f'{P}h1ok:')
    a(f'v_pk_add_f32 {v(RD, 2)}, {v(RD, 2)}, {v(RD + 2, 2)}')
    a(f'v_add_f32 v{T0}, v{RD}, v{RD + 1}')
    a(f's_xor_b32 s{sPRD}, s{sPRD}, {RP_SLOT}')
    a(f's_lshr_b32 s{sTAG}, s{sSTEP}, 1')
    a(f'v_mov_b32_dpp v{T1}, v{T0} row_shl:4 row_mask:0xf bank_mask:0xf')
    a(f'v_cvt_pk_bf16_f32 v{T0}, v{T0}, v{T1}')
    a(f'v_min_u32 v{T0}, -2, v{T0}')
    a(f'buffer_store_dword v{T0}, v{vMst}, {WS}, s{sMWR} offen {fl}')
    stamp(10)
    a(f'buffer_store_dword v{T3}, v{vMst}, {WS}, s{sMRS} offen {fl}')
    for j in range(4):
        a(f's_xor_b32 s{sP0 + j}, s{sP0 + j}, {RP_SLOT}')
    a(f's_xor_b32 s{sMWR}, s{sMWR}, {RM_SLOT}')
    a(f's_xor_b32 s{sMRS}, s{sMRS}, {RM_SLOT}')
    a(f's_and_b32 s{sTAG}, s{sTAG}, 1')
    a(f's_lshl_b32 s{sTRY}, s{sTRY}, 16')
    for x in fill:
        a(x)
    if not opt.get('noflag'):
        a(f's_add_u32 s{sNEED}, s{sSTEP}, 3')
        a(f's_lshr_b32 s{sNEED}, s{sNEED}, 1')
        a(f's_cmp_lt_u32 s{sSTEP}, 63')
        a(f's_cselect_b32 s{sNEED}, s{sNEED}, 0')
        a(f'v_cmp_gt_u32 vcc, s{sNEED}, v11')
        a(f's_cbranch_vccnz {P}fw')
        a(f'{P}fok:')
    a(f's_xor_b32 s{sFP}, s{sFP}, 4096')
    for i in range(opt.get('d2', (0, 0, 0, 0))[w]):
        a(f'v_mov_b32 v{T2}, 0')
    a(f'{P}h2:')
    m0, m1 = MA + 4 * own[0], MA + 4 * own[1]
    a(f'buffer_load_dwordx4 {v(m0, 4)}, v{vA}, {WS}, s{sMRD} offen sc1')
    a(f'buffer_load_dwordx4 {v(m1, 4)}, v{vA}, {WS}, s{sMRD} offen offset:1024 sc1')
    a(f's_add_u32 s{sTRY}, s{sTRY}, 1')
    a(f's_and_b32 s{S_A}, s{sTRY}, 0xffff')
    a(f's_cmp_gt_u32 s{S_A}, {MAXTRY}')
    a(f's_cbranch_scc1 L_fail')
    a('s_waitcnt vmcnt(1)')
    a(f'v_max3_u32 v{T0}, v{m0}, v{m0 + 1}, v{m0 + 2}')
    a('s_waitcnt vmcnt(0)')
    a(f'v_max3_u32 v{T1}, v{m0 + 3}, v{m1}, v{m1 + 1}')
    a(f'v_max3_u32 v{T0}, v{T0}, v{m1 + 2}, v{m1 + 3}')
    a(f'v_max_u32 v{T0}, v{T0}, v{T1}')
    a(f'v_cmp_eq_u32 vcc, -1, v{T0}')
    a(f's_cbranch_vccnz {P}h2')
    a(f's_xor_b32 s{sMRD}, s{sMRD}, {RM_SLOT}')
    a('s_waitcnt lgkmcnt(0)')
    if prof:
        if opt.get('idx'):
            nst[0] = len(opt['idx']) + 1
        stamp(11)
        n = nst[0]
        a('s_waitcnt lgkmcnt(0)')
        a(f's_lshl_b32 s{S_A}, s{sSTEP}, 5')
        a(f's_add_u32 s{S_A}, s{S_A}, s{S_H}')
        a(f's_lshl_b32 s{S_A}, s{S_A}, 2')
        a(f's_add_u32 s{S_A}, s{S_A}, {w}')
        a(f's_lshl_b32 s{S_A}, s{S_A}, 6')
        a(f's_add_u32 s{S_A}, s{S_A}, {PROF}')
        a(f'v_mov_b32 v{T0}, 0')
        for i in range(n):
            a(f'v_writelane_b32 v{T0}, s{sST + 2 * i}, {i}')
        a(f'v_writelane_b32 v{T0}, s{sTRY}, 15')
        a(f'v_lshrrev_b32 v{T1}, 2, v{vA}')
        a('s_mov_b64 exec, 0xffff')
        a(f'buffer_store_dword v{T0}, v{T1}, {WS}, s{S_A} offen')
        a('s_mov_b64 exec, -1')
    a(f's_branch {P}top')
    a(f'{P}h1:')
    a(ld[0]); a(ld[1])
    a(f's_add_u32 s{sTRY}, s{sTRY}, 1')
    a(f's_cmp_gt_u32 s{sTRY}, {MAXTRY}')
    a(f's_cbranch_scc1 L_fail')
    h1check(0)
    a(f's_cbranch_vccnz {P}h1')
    a(f's_branch {P}h1ok')
    if not opt.get('noflag'):
        a(f'{P}fw:')
        spin_flag(a, f'{P}fw2', sFP)
        a(f's_branch {P}fok')
    a(f'{P}last:')
    a(pub)
    a(f'v_mov_b32 v{T3}, {nsteps}')
    a('s_waitcnt vmcnt(0)')
    a(f'buffer_store_dword v{T3}, off, {WS}, s{sFR} sc1')
    a(f's_branch {exit_label}')


def first_m(a, w):
    srd(a, S_T, P_MEM, 8192)
    a(f'v_lshrrev_b32 v{T0}, 4, v{vA}')
    a(f'v_and_b32 v{T1}, 7, v{T0}')
    a(f'v_lshlrev_b32 v{T1}, 10, v{T1}')
    a(f'v_lshrrev_b32 v{T0}, 3, v{T0}')
    a(f'v_lshl_add_u32 v{T0}, v{T0}, 4, v{T1}')
    for c in (2 * w, 2 * w + 1):
        a(f'buffer_load_dwordx4 {v(MA + 4 * c, 4)}, v{T0}, s[{S_T}:{S_T + 3}], 0 offen offset:{c * 128}')
    for x in wq_preload(w)[:12] + zeros(AQ, 24):
        a(x)


def pieces():
    ps = [QkvPiece(P_WK, q, lambda d, n: ac(128 + d, n)) for q in range(4)]
    ps += [QkvPiece(P_WV, q, lambda d, n: v(128 + d, n)) for q in range(4)]
    ps += [QkvPiece(P_WQ, q, lambda d, n: ac(d, n)) for q in range(2)]
    ps += [WoPieceR(kk, dst=(lambda kk: lambda d, n: ac(64 + 32 * kk + d, n))(kk)) for kk in range(2)]
    ps += [QkvPiece(P_WQ, q, None, keep=(vA, vB)) for q in (2, 3)]
    ps += [WoPieceR(kk, keep=(vA, vB)) for kk in (2, 3)]
    return ps
```

```python
from common import *

VD = 16
VT = 20
VDO = 24
VTO = 26
VTMP = 28
WBUF = 32
S_SO = 20
S_A, S_B = 21, 22


def qkv_addr_setup(a):
    t0, t1, t2, t3 = VTMP, VTMP + 1, VTMP + 2, VTMP + 3
    a(f'v_lshrrev_b32 v{t0}, 4, v0')
    a(f'v_and_b32 v{t1}, 15, v0')
    a(f'v_and_b32 v{t2}, 1, v{t0}')
    a(f'v_lshlrev_b32 v{t2}, 1, v{t2}')
    a(f'v_xor_b32 v{t1}, v{t1}, v{t2}')
    a(f'v_lshlrev_b32 v{t0}, 13, v{t0}')
    for q in range(4):
        x = ((q & 1) << 2) | ((q >> 1) << 3)
        a(f'v_xor_b32 v{t2}, {x}, v{t1}')
        a(f'v_lshl_add_u32 v{t2}, v{t2}, 4, v{t0}')
        a(f'v_add_u32 v{VD + q}, {4 * q * 8192 - q * 1024}, v{t2}')
    a(f'v_lshrrev_b32 v{t0}, 5, v0')
    a(f'v_lshlrev_b32 v{t0}, 4, v{t0}')
    a(f'v_bfe_u32 v{t1}, v0, 4, 1')
    a(f'v_lshl_add_u32 v{t0}, v{t1}, 2, v{t0}')
    a(f'v_bfe_u32 v{t2}, v0, 2, 1')
    a(f'v_add_u32 v{t0}, v{t0}, v{t2}')
    a(f'v_bfe_u32 v{t3}, v0, 3, 1')
    a(f'v_lshl_add_u32 v{t0}, v{t3}, 3, v{t0}')
    a(f'v_lshl_add_u32 v{t2}, v{t1}, 1, v{t2}')
    a(f'v_lshl_add_u32 v{t2}, v{t3}, 2, v{t2}')
    a(f'v_lshlrev_b32 v{t2}, 1, v{t2}')
    a(f'v_bfe_u32 v{t1}, v0, 1, 1')
    a(f's_lshl_b32 s{S_A}, s{S_W}, 2')
    a(f'v_add_u32 v{t1}, s{S_A}, v{t1}')
    a(f'v_xor_b32 v{t1}, v{t1}, v{t2}')
    a(f'v_lshlrev_b32 v{t0}, 8, v{t0}')
    a(f'v_and_b32 v{t3}, 1, v0')
    a(f'v_lshl_add_u32 v{t0}, v{t3}, 3, v{t0}')
    a(f'v_lshl_add_u32 v{VT}, v{t1}, 4, v{t0}')
    a(f'v_xor_b32 v{VT + 1}, 32, v{VT}')
    a(f'v_add_u32 v{VT + 2}, 0x10000, v{VT}')
    a(f'v_add_u32 v{VT + 3}, 0x10000, v{VT + 1}')


def wo_addr_setup(a):
    t0, t1, t2, t3 = VTMP, VTMP + 1, VTMP + 2, VTMP + 3
    a(f's_lshr_b32 s{S_A}, s{S_W}, 1')
    a(f's_lshl_b32 s{S_A}, s{S_A}, 3')
    a(f'v_xor_b32 v{t0}, s{S_A}, v0')
    a(f'v_lshlrev_b32 v{VDO}, 4, v{t0}')
    a(f'v_xor_b32 v{VDO + 1}, 64, v{VDO}')
    a(f'v_bfe_u32 v{t1}, v0, 4, 1')
    a(f'v_lshrrev_b32 v{t0}, 5, v0')
    a(f'v_lshlrev_b32 v{t0}, 2, v{t0}')
    a(f'v_lshl_add_u32 v{t0}, v{t1}, 4, v{t0}')
    a(f'v_bfe_u32 v{t2}, v0, 2, 1')
    a(f'v_add_u32 v{t0}, v{t0}, v{t2}')
    a(f'v_lshl_add_u32 v{t2}, v{t1}, 1, v{t2}')
    a(f'v_lshlrev_b32 v{t2}, 2, v{t2}')
    a(f'v_bfe_u32 v{t1}, v0, 3, 1')
    a(f'v_bfe_u32 v{t3}, v0, 1, 1')
    a(f'v_lshl_add_u32 v{t1}, v{t1}, 1, v{t3}')
    a(f's_lshl_b32 s{S_A}, s{S_W}, 2')
    a(f'v_add_u32 v{t1}, s{S_A}, v{t1}')
    a(f'v_xor_b32 v{t1}, v{t1}, v{t2}')
    a(f'v_lshlrev_b32 v{t0}, 10, v{t0}')
    a(f'v_and_b32 v{t3}, 1, v0')
    a(f'v_lshl_add_u32 v{t0}, v{t3}, 3, v{t0}')
    a(f'v_lshl_add_u32 v{VTO}, v{t1}, 4, v{t0}')
    a(f'v_add_u32 v{VTO + 1}, 0x10000, v{VTO}')


class QkvPiece:
    ndma = 8

    def __init__(self, ptr, quarter, dst, keep=None):
        self.ptr, self.quarter, self.dst = ptr, quarter, dst
        self.keep = keep
        if keep:
            self.dst = lambda d, n: v(WBUF + d - 32 * quarter, n)

    def issue(self, a, slot):
        srd(a, S_T, self.ptr, 512 * 8192)
        for uu in range(2):
            a(f's_lshl_b32 s{S_A}, s{S_W}, 18')
            a(f's_lshl_b32 s{S_B}, s{S_H}, 8')
            a(f's_add_u32 s{S_A}, s{S_A}, s{S_B}')
            a(f's_add_u32 s{S_SO}, s{S_A}, {(128 * self.quarter + 16 * uu) * 8192}')
            a(f's_lshl_b32 s{S_A}, s{S_W}, 13')
            a(f's_add_u32 m0, s{S_A}, {slot * 32768 + 16 * uu * 256}')
            for q in range(4):
                a(f'buffer_load_dwordx4 v{VD + q}, s[{S_T}:{S_T + 3}], s{S_SO} offen offset:{q * 1024} lds')

    def consume(self, a, slot):
        for cc in range(2):
            for ft in range(2):
                for hh in range(2):
                    for x in range(2):
                        d = 16 * (2 * self.quarter + cc) + 8 * ft + 4 * hh + 2 * x
                        imm = (slot & 1) * 32768 + (64 * cc + 32 * hh + 2 * x) * 256
                        a(f'ds_read_b64_tr_b16 {self.dst(d, 2)}, v{VT + ft + 2 * (slot >> 1)} offset:{imm}')

    def after(self, a, slot):
        if self.keep:
            write_back(a, slot, *self.keep)


class WoPieceR:
    ndma = 8

    def __init__(self, kk, dst=None, keep=None):
        self.kk, self.keep = kk, keep
        self.dst = dst if dst else (lambda d, n: v(WBUF + d, n))

    def issue(self, a, slot):
        srd(a, S_T, P_WO, 4096 * 1024)
        for uu in range(2):
            a(f's_lshl_b32 s{S_A}, s{S_W}, 13')
            a(f's_lshl_b32 s{S_B}, s{S_H}, 17')
            a(f's_add_u32 s{S_B}, s{S_A}, s{S_B}')
            a(f's_add_u32 s{S_SO}, s{S_B}, {(32 * self.kk + 4 * uu) * 1024}')
            a(f's_add_u32 m0, s{S_A}, {slot * 32768 + 4 * uu * 1024}')
            for q in range(4):
                a(f'buffer_load_dwordx4 v{VDO + (q & 1)}, s[{S_T}:{S_T + 3}], s{S_SO} offen offset:{q * 1024} lds')

    def consume(self, a, slot):
        for j in range(4):
            for hh in range(2):
                for pp in range(2):
                    imm = (slot & 1) * 32768 + (8 * hh + 2 * pp) * 1024 + 256 * j
                    a(f'ds_read_b64_tr_b16 {self.dst(8 * j + 4 * hh + 2 * pp, 2)}, v{VTO + (slot >> 1)} offset:{imm}')

    def after(self, a, slot):
        if self.keep:
            write_back(a, slot, *self.keep)


def write_back(a, slot, vA, vB):
    a(f's_lshl_b32 s{S_A}, s{S_W}, 13')
    a(f'v_add_u32 v{VTMP}, s{S_A}, v{vB if slot >> 1 else vA}')
    for q in range(8):
        a(f'ds_write_b128 v{VTMP}, {v(WBUF + 4 * q, 4)} offset:{(slot & 1) * 32768 + q * 1024}')


def ring_load(a, pieces, hook=None):
    n = len(pieces)
    for p in range(min(4, n)):
        pieces[p].issue(a, p % 4)
    if hook:
        hook(sum(x.ndma for x in pieces[:4]))
    for p in range(n):
        later = sum(pieces[q].ndma for q in range(p + 1, min(p + 4, n)))
        a(f's_waitcnt vmcnt({later})')
        a('s_barrier')
        pieces[p].consume(a, p % 4)
        a('s_waitcnt lgkmcnt(0)')
        a('s_barrier')
        pieces[p].after(a, p % 4)
        if p + 4 < n:
            pieces[p + 4].issue(a, p % 4)
    a('s_waitcnt lgkmcnt(0)')


VDR = 16
VTR = 20
VDF = 22
VTF = 24


def c_addr_setup(a):
    t0, t1, t2 = VTMP, VTMP + 1, VTMP + 2
    for q in range(4):
        a(f'v_xor_b32 v{t0}, {4 * q}, v0')
        a(f'v_lshlrev_b32 v{VDR + q}, 4, v{t0}')
    a(f'v_lshrrev_b32 v{t0}, 2, v0')
    a(f'v_and_b32 v{t1}, 3, v{t0}')
    a(f'v_lshlrev_b32 v{t1}, 2, v{t1}')
    a(f'v_and_b32 v{t2}, 3, v0')
    a(f'v_add_u32 v{t1}, v{t1}, v{t2}')
    a(f's_lshl_b32 s{S_A}, s{S_W}, 4')
    a(f'v_add_u32 v{t1}, s{S_A}, v{t1}')
    a(f'v_lshlrev_b32 v{t0}, 10, v{t0}')
    a(f'v_lshl_add_u32 v{VTR}, v{t1}, 4, v{t0}')
    a(f'v_add_u32 v{VTR + 1}, 0x10000, v{VTR}')
    a(f'v_lshrrev_b32 v{t0}, 3, v0')
    a(f'v_mul_u32_u24 v{t0}, 3584, v{t0}')
    a(f'v_and_b32 v{t1}, 7, v0')
    a(f'v_bfe_u32 v{t2}, v0, 4, 1')
    a(f'v_lshlrev_b32 v{t2}, 1, v{t2}')
    a(f'v_xor_b32 v{t1}, v{t1}, v{t2}')
    a(f'v_lshl_add_u32 v{VDF}, v{t1}, 4, v{t0}')
    a(f'v_xor_b32 v{t1}, 4, v{t1}')
    a(f'v_lshl_add_u32 v{VDF + 1}, v{t1}, 4, v{t0}')
    a(f'v_lshrrev_b32 v{t0}, 4, v0')
    a(f'v_lshlrev_b32 v{t0}, 3, v{t0}')
    a(f'v_bfe_u32 v{t1}, v0, 2, 2')
    a(f'v_add_u32 v{t0}, v{t0}, v{t1}')
    a(f'v_lshlrev_b32 v{t0}, 7, v{t0}')
    a(f'v_bfe_u32 v{t1}, v0, 3, 2')
    a(f'v_lshlrev_b32 v{t1}, 1, v{t1}')
    a(f'v_bfe_u32 v{t2}, v0, 1, 1')
    a(f's_lshl_b32 s{S_A}, s{S_W}, 1')
    a(f'v_add_u32 v{t2}, s{S_A}, v{t2}')
    a(f'v_xor_b32 v{t1}, v{t1}, v{t2}')
    a(f'v_lshl_add_u32 v{t0}, v{t1}, 4, v{t0}')
    a(f'v_and_b32 v{t1}, 1, v0')
    a(f'v_lshl_add_u32 v{VTF}, v{t1}, 3, v{t0}')
    a(f'v_add_u32 v{VTF + 1}, 0x10000, v{VTF}')


class RowPiece:
    ndma = 8

    def __init__(self, ptr, nbytes, hshift, kk, dst):
        self.ptr, self.nbytes, self.hshift, self.kk, self.dst = ptr, nbytes, hshift, kk, dst

    def issue(self, a, slot):
        srd(a, S_T, self.ptr, self.nbytes)
        for uu in range(2):
            a(f's_lshl_b32 s{S_A}, s{S_W}, 13')
            a(f's_lshl_b32 s{S_B}, s{S_H}, {self.hshift}')
            a(f's_add_u32 s{S_B}, s{S_A}, s{S_B}')
            a(f's_add_u32 s{S_SO}, s{S_B}, {(32 * self.kk + 4 * uu) * 1024}')
            a(f's_add_u32 m0, s{S_A}, {slot * 32768 + 4 * uu * 1024}')
            for q in range(4):
                a(f'buffer_load_dwordx4 v{VDR + q}, s[{S_T}:{S_T + 3}], s{S_SO} offen offset:{q * 1024} lds')

    def consume(self, a, slot):
        for aa in range(4):
            a(f'v_xor_b32 v{VTMP + aa}, {64 * aa}, v{VTR + (slot >> 1)}')
        for ct in range(8):
            for x in range(2):
                imm = (slot & 1) * 32768 + 16 * x * 1024 + 8 * (ct & 1)
                a(f'ds_read_b64_tr_b16 {self.dst(ct, x)}, v{VTMP + (ct >> 1)} offset:{imm}')

    def after(self, a, slot):
        pass


class FfnPiece:
    ndma = 8

    def __init__(self, ptr, half, dst):
        self.ptr, self.half, self.dst = ptr, half, dst

    def issue(self, a, slot):
        srd(a, S_T, self.ptr, 512 * 3584)
        a(f's_mul_i32 s{S_A}, s{S_W}, {64 * 3584}')
        a(f's_lshl_b32 s{S_B}, s{S_H}, 7')
        a(f's_add_u32 s{S_B}, s{S_A}, s{S_B}')
        a(f's_lshl_b32 s{S_A}, s{S_W}, 13')
        for u in range(8):
            a(f's_add_u32 s{S_SO}, s{S_B}, {(256 * self.half + 8 * u) * 3584}')
            a(f's_add_u32 m0, s{S_A}, {slot * 32768 + u * 1024}')
            a(f'buffer_load_dwordx4 v{VDF + (u & 1)}, s[{S_T}:{S_T + 3}], s{S_SO} offen lds')

    def consume(self, a, slot):
        for k in range(8):
            for x in range(2):
                imm = (slot & 1) * 32768 + (32 * k + 4 * x) * 128
                a(f'ds_read_b64_tr_b16 {self.dst(8 * self.half + k, x)}, v{VTF + (slot >> 1)} offset:{imm}')

    def after(self, a, slot):
        pass
```

```python
import sys, json
from common import *
from weights import *
import rec, prod, cons

WS = f's[{S_WS}:{S_WS + 3}]'
DBG = f's[{S_DBG}:{S_DBG + 3}]'
S_MODE = 23
S_WG = 3
S_U = 96
ROPT = {"d1": [19, 19, 19, 19], "f1": [0, 0, 0, 0], "x1": [0, 0, 10, 20], "d2": [60, 60, 60, 60]}


def arrive(a, lbl):
    a('s_barrier')
    a(f's_cmp_lg_u32 s{S_W}, 0')
    a(f's_cbranch_scc1 {lbl}_done')
    a(f's_and_b32 s{S_U}, s{S_WG}, 3')
    a(f's_lshl_b32 s{S_U}, s{S_U}, 6')
    a(f's_lshl_b32 s{S_U + 1}, s{S_MODE}, 2')
    a(f's_add_u32 s{S_U}, s{S_U}, s{S_U + 1}')
    a(f's_add_u32 s{S_U}, s{S_U}, 32')
    a(f's_mov_b32 s{S_U + 2}, 1')
    a(f's_atomic_add s{S_U + 2}, s[{P_DBG}:{P_DBG + 1}], s{S_U} glc')
    a('s_waitcnt lgkmcnt(0)')
    a(f's_cmp_lg_u32 s{S_U + 2}, 63')
    a(f's_cbranch_scc1 {lbl}_done')
    a(f's_add_u32 s{S_U}, s{S_U + 1}, 40')
    a(f's_mov_b32 s{S_U + 2}, 1')
    a(f's_atomic_add s{S_U + 2}, s[{P_DBG}:{P_DBG + 1}], s{S_U} glc')
    a('s_waitcnt lgkmcnt(0)')
    a(f's_cmp_lg_u32 s{S_U + 2}, 3')
    a(f's_cbranch_scc1 {lbl}_done')
    a('v_mbcnt_lo_u32_b32 v126, -1, 0')
    a('v_mbcnt_hi_u32_b32 v126, -1, v126')
    a(f's_mov_b32 s{S_U + 2}, 3')
    a(f's_cmp_lg_u32 s{S_MODE}, 0')
    a(f's_cbranch_scc1 {lbl}_tell')
    a(f's_mov_b32 s{S_U + 2}, 1')
    for off in (0, 64, 128, 192, 196, 200, 204, 208):
        a(f's_mov_b32 s{S_U}, 0')
        a(f's_atomic_add s{S_U}, s[{P_DBG}:{P_DBG + 1}], {off} glc')
        a('s_waitcnt lgkmcnt(0)')
        a(f's_cmp_eq_u32 s{S_U}, 32')
        a(f's_cselect_b32 s{S_U + 2}, s{S_U + 2}, 2')
    if FORCE_SLOW:
        a(f's_mov_b32 s{S_U + 2}, 2')
    a(f'{lbl}_tell:')
    a('v_lshlrev_b32 v126, 7, v126')
    a(f'v_mov_b32 v127, s{S_U + 2}')
    for i in range(4):
        a(f's_mov_b32 s{S_U}, {MBOX + i * 8192}')
        a(f'buffer_store_dword v127, v126, {WS}, s{S_U} offen sc1')
    a(f'{lbl}_done:')


def wait_go(a, lbl):
    a(f's_lshl_b32 s{S_U}, s{S_WG}, 7')
    a(f's_add_u32 s{S_U}, s{S_U}, {MBOX}')
    a(f's_lshl_b32 s{S_U + 1}, s{S_MODE}, 1')
    a(f's_mov_b32 s{S_U + 2}, 0')
    a(f'{lbl}:')
    a(f'buffer_load_dword v127, off, {WS}, s{S_U} sc1')
    a(f's_add_u32 s{S_U + 2}, s{S_U + 2}, 1')
    a(f's_cmp_gt_u32 s{S_U + 2}, 400000')
    a('s_cbranch_scc1 L_fail')
    a('s_waitcnt vmcnt(0)')
    a(f'v_readfirstlane_b32 s{S_U + 3}, v127')
    a(f's_cmp_eq_u32 s{S_U + 3}, s{S_U + 1}')
    a(f's_cbranch_scc0 {lbl}_got')
    a('s_sleep 2')
    a(f's_branch {lbl}')
    a(f'{lbl}_got:')
    a(f's_cmp_eq_u32 s{S_U + 3}, 2')
    a('s_cbranch_scc1 L_redo')


def lane_id(a):
    a('v_mbcnt_lo_u32_b32 v0, -1, 0')
    a('v_mbcnt_hi_u32_b32 v0, -1, v0')


def stamp(a, k):
    if STAMPS:
        a(f's_memrealtime s[{S_U}:{S_U + 1}]')
        a(f's_lshl_b32 s{S_U + 2}, s{S_WG}, 7')
        a(f's_lshl_b32 s{S_U + 3}, s{S_W}, 5')
        a(f's_add_u32 s{S_U + 2}, s{S_U + 2}, s{S_U + 3}')
        a(f's_add_u32 s{S_U + 2}, s{S_U + 2}, {PROF + 4 * k}')
        a('s_waitcnt lgkmcnt(0)')
        a(f'v_mov_b32 v127, s{S_U}')
        a(f'buffer_store_dword v127, off, {WS}, s{S_U + 2}')


def build(opt={}):
    global FORCE_SLOW, STAMPS
    FORCE_SLOW = opt.get('force_slow', False)
    STAMPS = opt.get('stamps', False)
    slow = opt.get('slow', False)
    ropt = dict(ROPT, **opt.get('r', {}))
    a = Asm()
    a('s_cmp_ge_u32 s2, 256')
    a('s_cbranch_scc1 L_end')
    a(f's_mov_b32 s{S_WG}, s2')
    load_args(a)
    stamp(a, 0)
    a(f's_mov_b32 s{S_MODE}, 0')
    a('v_mov_b32 v1, 0')
    a(f's_cmp_lg_u32 s{S_W}, 0')
    a('s_cbranch_scc1 L_norank')
    a(f's_min_u32 s{S_U}, s{S_XCC}, 8')
    a(f's_lshl_b32 s{S_U + 1}, s{S_U}, 6')
    a(f's_lshl_b32 s{S_U + 2}, s{S_U}, 2')
    a(f's_add_u32 s{S_U + 2}, s{S_U + 2}, 180')
    a(f's_cmp_lt_u32 s{S_U}, 3')
    a(f's_cselect_b32 s{S_U}, s{S_U + 1}, s{S_U + 2}')
    a(f's_mov_b32 s{S_U + 2}, 1')
    a(f's_atomic_add s{S_U + 2}, s[{P_DBG}:{P_DBG + 1}], s{S_U} glc')
    a(f's_lshl_b32 s{S_U + 1}, s{S_WG}, 7')
    a(f's_add_u32 s{S_U + 1}, s{S_U + 1}, {MBOX}')
    a(f'buffer_store_dword v1, off, {WS}, s{S_U + 1} sc1')
    a('s_waitcnt lgkmcnt(0)')
    a(f'v_mov_b32 v2, s{S_U + 2}')
    a('ds_write_b32 v1, v2')
    a('s_waitcnt lgkmcnt(0)')
    a('L_norank:')
    a('s_barrier')
    a('ds_read_b32 v2, v1')
    a('s_waitcnt lgkmcnt(0)')
    a(f'v_readfirstlane_b32 s{S_H}, v2')
    a('s_barrier')
    a('L_role:')
    lane_id(a)
    stamp(a, 1)
    a(f's_cmp_ge_u32 s{S_H}, 32')
    a('s_cbranch_scc1 L_none')
    a(f's_cmp_gt_u32 s{S_XCC}, 7')
    a('s_cbranch_scc1 L_none')
    a(f's_cmp_eq_u32 s{S_XCC}, 0')
    a('s_cbranch_scc1 L_R')
    a(f's_cmp_le_u32 s{S_XCC}, {NP_}')
    a('s_cbranch_scc1 L_P')

    a(f's_sub_u32 s{S_G}, s{S_XCC}, {1 + NP_}')
    cons.c_scalars(a)
    cons.c_init_flags(a, 'sc1')
    a(f's_cmp_ge_u32 s{S_G}, 4')
    a('s_cbranch_scc1 L_noln')
    a(f's_lshl_b32 s{S_U}, s{S_G}, 5')
    a(f's_add_u32 s{S_U}, s{S_U}, s{S_H}')
    prod.ln1(a, S_U, 'LN')
    a('L_noln:')
    a('s_waitcnt vmcnt(0)')
    arrive(a, 'C_arr')
    stamp(a, 2)
    c_addr_setup(a)
    ring_load(a, cons.c_pieces())
    cons.c_setup(a)
    stamp(a, 3)
    wait_go(a, 'C_go')
    stamp(a, 4)
    if slow:
        a(f's_cmp_lg_u32 s{S_MODE}, 0')
        a('s_cbranch_scc1 C_loop_s')
    cons.c_main(a, 'L_exit')
    if slow:
        cons.c_main(a, 'L_exit', 'sc1', '_s')

    a('L_P:')
    a(f's_sub_u32 s{S_G}, s{S_XCC}, 1')
    qkv_addr_setup(a)
    prod.p_setup(a)
    prod.p_init_flags(a)

    def hook_p(n):
        a(f's_waitcnt vmcnt({n})')
        arrive(a, 'P_arr')
    ring_load(a, prod.p_pieces(), hook_p)
    stamp(a, 3)
    wait_go(a, 'P_go')
    stamp(a, 4)
    prod.p_main(a, 'L_exit')

    a('L_R:')
    qkv_addr_setup(a)
    wo_addr_setup(a)
    rec.setup(a)
    if slow:
        a(f's_cmp_lg_u32 s{S_MODE}, 0')
        a('s_cbranch_scc1 R_init_s')
    rec.init_comm(a)
    if slow:
        a('s_branch R_init_d')
        a('R_init_s:')
        rec.init_comm(a, 'sc1')
        a('R_init_d:')

    def hook_r(n):
        a(f's_waitcnt vmcnt({n})')
        arrive(a, 'R_arr')
    ring_load(a, rec.pieces(), hook_r)
    stamp(a, 3)
    wait_go(a, 'R_go')
    stamp(a, 4)
    rec.first_kv(a)
    stamp(a, 5)
    for sfx, fl in ((('', ''), ('s', 'sc1')) if slow else (('', ''),)):
        if slow and not sfx:
            a(f's_cmp_lg_u32 s{S_MODE}, 0')
            a('s_cbranch_scc1 L_ws')
        a(f'L_w{sfx}:')
        for w in range(1, 4):
            a(f's_cmp_eq_u32 s{S_W}, {w}')
            a(f's_cbranch_scc1 L_w{w}{sfx}')
        for w in range(4):
            a(f'L_w{w}{sfx}:')
            rec.first_m(a, w)
            a('s_waitcnt vmcnt(0) lgkmcnt(0)')
            rec.main_loop(a, w, None, opt=ropt, fl=fl, sfx=sfx)

    a('L_none:')
    a('s_waitcnt vmcnt(0)')
    arrive(a, 'N_arr')
    wait_go(a, 'N_go')
    a('s_branch L_fail')
    a('L_redo:')
    if slow:
        a('s_waitcnt vmcnt(0) lgkmcnt(0)')
        a('buffer_wbl2 sc1')
        a('s_waitcnt vmcnt(0)')
        a('buffer_inv sc1')
        a('s_waitcnt vmcnt(0)')
        a('s_barrier')
        a(f's_mov_b32 s{S_MODE}, 1')
        a(f's_lshr_b32 s{S_XCC}, s{S_WG}, 5')
        a(f's_and_b32 s{S_H}, s{S_WG}, 31')
        a('s_branch L_role')
    a('L_fail:')
    a('v_mov_b32 v126, 56')
    a('v_mov_b32 v127, 1')
    a(f'buffer_atomic_add v127, v126, {DBG}, 0 offen')
    a('L_exit:')
    stamp(a, 6)
    a('s_waitcnt vmcnt(0) lgkmcnt(0)')
    a('L_end:')
    a('s_endpgm')
    n = a.pad(verbose=opt.get('v'))
    k = NAME + '_kernel'
    return wrap([(k, 256, 256, 163840)], [(k, a)])


if __name__ == '__main__':
    opt = json.loads(sys.argv[2]) if len(sys.argv) > 2 else {}
    open(sys.argv[1], 'w').write(build(opt))
```

```python
from common import *
from weights import *
from prod import f32, merge_stats
import math

WS = f's[{S_WS}:{S_WS + 3}]'
S_X = 44
S_O = 48
vA, vKld, vPst, vRld, vRow, vHst, vHrd, vKtr, vVm, vFl, vOne, vF4, vActW, vOw, T = 0, 1, 2, 3, 4, 5, 6, 8, 9, 10, 11, 12, 13, 14, 15
BIAS, MMASK, HP, SEL = 16, 24, 26, 28
Q, K, V, KM, VM, S, PP, OT, TT = 32, 48, 80, 96, 112, 120, 132, 140, 156
OB, ACC = 96, 128
RED, RD, XR = 32, 64, 68
XB, GU, AT = 32, 48, 64
AB = 96
WD = 192
L_KVM, L_O, L_HN, L_ACT, L_ST = 0, 0x4000, 0x8000, 0x6000, 0x7000
sSEG, sIT, sQKV, sKVM, sP1W, sP1R, sHNW, sHNR, sFW, sFR, sFP, sFRR, sROW, sTRY, sC0, sNEED = 24, 25, 26, 27, 28, 29, 30, 31, 32, 33, 34, 35, 36, 37, 38, 40
sT = 41
CEXP = f32((128 ** -0.5) * 1.4426950408889634)
MAXTRY = 400000


def c_pieces():
    ps = [RowPiece(P_WO, 4096 * 1024, 17, kk, (lambda kk: lambda ct, x: ac(16 * ct + 4 * kk + 2 * x, 2))(kk)) for kk in range(4)]
    ps += [FfnPiece(P_WG, hf, lambda k, x: ac(128 + 4 * k + 2 * x, 2)) for hf in range(2)]
    ps += [FfnPiece(P_WU, hf, lambda k, x: ac(192 + 4 * k + 2 * x, 2)) for hf in range(2)]
    ps += [RowPiece(P_WD, 1792 * 1024, 16, kd, (lambda kd: lambda ct, x: v(WD + 8 * ct + 4 * kd + 2 * x, 2))(kd)) for kd in range(2)]
    return ps


def c_scalars(a):
    a(f's_mov_b32 s{sSEG}, s{S_G}')
    a(f's_mov_b32 s{sIT}, 0')
    a(f's_mul_i32 s{S_A}, s{S_G}, {QKV_S}')
    a(f's_mul_i32 s{S_B}, s{S_H}, {QKV_H}')
    a(f's_add_u32 s{S_A}, s{S_A}, s{S_B}')
    a(f's_add_u32 s{sQKV}, s{S_A}, {QKV}')
    a(f's_mul_i32 s{S_A}, s{S_G}, {KVM_S}')
    a(f's_lshl_b32 s{S_B}, s{S_H}, 12')
    a(f's_add_u32 s{S_A}, s{S_A}, s{S_B}')
    a(f's_add_u32 s{sKVM}, s{S_A}, {KVM}')
    a(f's_mul_i32 s{S_A}, s{S_G}, {CP_G}')
    a(f's_lshl_b32 s{S_B}, s{S_W}, 8')
    a(f's_add_u32 s{S_A}, s{S_A}, s{S_B}')
    a(f's_add_u32 s{S_A}, s{S_A}, {CPART}')
    a(f's_lshl_b32 s{S_B}, s{S_H}, 10')
    a(f's_add_u32 s{sP1W}, s{S_A}, s{S_B}')
    a(f's_mul_i32 s{S_B}, s{S_H}, {CP_R}')
    a(f's_add_u32 s{sP1R}, s{S_A}, s{S_B}')
    a(f's_lshl_b32 s{S_A}, s{S_G}, 15')
    a(f's_lshl_b32 s{S_B}, s{S_W}, 12')
    a(f's_add_u32 s{S_A}, s{S_A}, s{S_B}')
    a(f's_add_u32 s{sHNR}, s{S_A}, {HN}')
    a(f's_lshr_b32 s{S_A}, s{S_H}, 4')
    a(f's_lshl_b32 s{S_A}, s{S_A}, 14')
    a(f's_and_b32 s{S_B}, s{S_H}, 15')
    a(f's_lshl_b32 s{S_B}, s{S_B}, 7')
    a(f's_add_u32 s{S_A}, s{S_A}, s{S_B}')
    a(f's_add_u32 s{sHNW}, s{sHNR}, s{S_A}')
    a(f's_mul_i32 s{S_A}, s{S_G}, {3 * 512}')
    a(f's_lshl_b32 s{S_B}, s{S_W}, 7')
    a(f's_add_u32 s{S_A}, s{S_A}, s{S_B}')
    a(f's_add_u32 s{sFR}, s{S_A}, {F_C}')
    a(f's_lshl_b32 s{S_B}, s{S_H}, 2')
    a(f's_add_u32 s{sFW}, s{sFR}, s{S_B}')
    a(f's_lshl_b32 s{S_A}, s{S_H}, 7')
    a(f's_add_u32 s{sFP}, s{S_A}, {F_P}')
    a(f's_add_u32 s{sFRR}, s{S_A}, {F_R}')
    a(f's_lshl_b32 s{S_A}, s{S_G}, 5')
    a(f's_add_u32 s{S_A}, s{S_A}, s{S_H}')
    a(f's_lshl_b32 s{S_A}, s{S_A}, 10')
    a(f's_lshl_b32 s{S_B}, s{S_W}, 8')
    a(f's_add_u32 s{sROW}, s{S_A}, s{S_B}')
    a(f's_mov_b32 s{sC0}, {CEXP}')
    a(f's_mov_b32 s{sC0 + 1}, {CEXP}')
    srd(a, S_X, P_X, 2048 * 1024)
    srd(a, S_O, P_OUT, 2048 * 1024)


def c_init_flags(a, fl=''):
    a('v_cmp_eq_u32 vcc, 0, v0')
    a(f'v_mov_b32 v3, {OOB}')
    a(f'v_cndmask_b32 v{vOne}, v3, v0, vcc')
    a('v_mov_b32 v3, 0')
    for hop in range(3):
        a(f'buffer_store_dword v3, v{vOne}, {WS}, s{sFW} offen offset:{hop * 512} {fl}')


def c_setup(a):
    L, t0, t1, t2 = 32, 33, 34, 35
    a(f'v_mov_b32 v{L}, v0')
    n, g = 36, 37
    a(f'v_and_b32 v{n}, 15, v{L}')
    a(f'v_lshrrev_b32 v{g}, 4, v{L}')
    a(f'v_lshlrev_b32 v{vA}, 4, v{L}')
    a(f'v_bfe_u32 v{t0}, v{L}, 2, 1')
    a(f'v_lshlrev_b32 v{t0}, 12, v{t0}')
    a(f'v_lshl_add_u32 v{t0}, v{g}, 8, v{t0}')
    a(f'v_bfe_u32 v{t1}, v{L}, 3, 1')
    a(f'v_lshl_add_u32 v{t0}, v{t1}, 6, v{t0}')
    a(f'v_and_b32 v{t1}, 3, v{L}')
    a(f'v_lshl_add_u32 v{vKld}, v{t1}, 4, v{t0}')
    a(f'v_mul_u32_u24 v{t0}, {CP_R}, v{n}')
    a(f'v_lshl_add_u32 v{vPst}, v{g}, 4, v{t0}')
    a(f'v_lshlrev_b32 v{t0}, 10, v{g}')
    a(f'v_lshl_add_u32 v{vRld}, v{n}, 4, v{t0}')
    a(f'v_mov_b32 v{t2}, {OOB}')
    a(f'v_cmp_gt_u32 vcc, 32, v{L}')
    a(f'v_lshlrev_b32 v{t0}, 4, v{n}')
    a(f'v_lshl_add_u32 v{t0}, v{g}, 3, v{t0}')
    a(f'v_cndmask_b32 v{vRow}, v{t2}, v{t0}, vcc')
    a(f's_bfe_u32 s{S_A}, s{S_H}, {1 | (3 << 16)}')
    a(f'v_and_b32 v{t0}, 7, v{L}')
    a(f'v_xor_b32 v{t0}, s{S_A}, v{t0}')
    a(f'v_lshlrev_b32 v{t0}, 4, v{t0}')
    a(f'v_bfe_u32 v{t1}, v{L}, 3, 1')
    a(f'v_lshl_add_u32 v{t0}, v{t1}, 11, v{t0}')
    a(f'v_lshl_add_u32 v{t0}, v{g}, 3, v{t0}')
    a(f'v_cndmask_b32 v{vHst}, v{t2}, v{t0}, vcc')
    a(f'v_lshrrev_b32 v{t0}, 1, v{n}')
    a(f'v_xor_b32 v{t0}, v{t0}, v{g}')
    a(f'v_lshlrev_b32 v{t0}, 4, v{t0}')
    a(f'v_lshl_add_u32 v{vHrd}, v{n}, 7, v{t0}')
    a(f'v_xor_b32 v{vHrd + 1}, 64, v{vHrd}')
    a(f's_lshl_b32 s{S_A}, s{S_W}, 12')
    a(f'v_and_b32 v{t0}, 1, v{L}')
    a(f'v_lshlrev_b32 v{t0}, 4, v{t0}')
    a(f'v_lshrrev_b32 v{t1}, 2, v{L}')
    a(f'v_add_u32 v{t0}, v{t0}, v{t1}')
    a(f'v_lshlrev_b32 v{t0}, 4, v{t0}')
    a(f'v_add_u32 v{vKtr}, s{S_A}, v{t0}')
    a(f's_lshr_b32 s{S_B}, s{S_W}, 1')
    a(f's_lshl_b32 s{S_B}, s{S_B}, 11')
    a(f's_add_u32 s{S_A}, s{S_A}, s{S_B}')
    a(f's_add_u32 s{S_A}, s{S_A}, 8')
    a(f'v_and_b32 v{t0}, 31, v{L}')
    a(f'v_lshlrev_b32 v{t1}, 4, v{t0}')
    a(f'v_add_u32 v{vVm}, s{S_A}, v{t1}')
    a(f'v_lshlrev_b32 v{vFl}, 2, v{t0}')
    a(f'v_cmp_eq_u32 vcc, 0, v{L}')
    a(f'v_cndmask_b32 v{vOne}, v{t2}, v{L}, vcc')
    a(f'v_and_b32 v{t0}, 3, v{L}')
    a(f'v_lshlrev_b32 v{vF4}, 2, v{t0}')
    a(f's_and_b32 s{S_A}, s{S_W}, 1')
    a(f's_lshr_b32 s{S_B}, s{S_W}, 1')
    a(f's_lshl_b32 s{sT}, s{S_A}, 3')
    a(f's_lshl_b32 s{sT + 1}, s{S_B}, 10')
    a(f's_add_u32 s{sT}, s{sT}, s{sT + 1}')
    a(f'v_add_u32 v{vActW}, s{sT}, v{vA}')
    a(f's_lshl_b32 s{sT}, s{S_A}, 12')
    a(f's_lshl_b32 s{sT + 1}, s{S_B}, 11')
    a(f's_add_u32 s{sT}, s{sT}, s{sT + 1}')
    a(f'v_add_u32 v{vOw}, s{sT}, v{vA}')
    a(f's_lshl_b32 s{S_A}, s{S_A}, 4')
    a(f'v_add_u32 v{t0}, s{S_A}, v{n}')
    a(f'v_and_b32 v{t1}, 1, v{g}')
    a(f'v_lshlrev_b32 v{t1}, 4, v{t1}')
    a(f'v_sub_u32 v{t0}, v{t0}, v{t1}')
    a(f'v_lshrrev_b32 v{t1}, 1, v{g}')
    a(f'v_lshlrev_b32 v{t1}, 2, v{t1}')
    a(f'v_sub_u32 v{t0}, v{t0}, v{t1}')
    a(f'v_mov_b32 v{t1}, 0xff800000')
    for hh in range(2):
        for r in range(4):
            a(f'v_cmp_gt_i32 vcc, {8 * hh + r}, v{t0}')
            a(f'v_cndmask_b32 v{BIAS + 4 * hh + r}, 0, v{t1}, vcc')
    a(f'v_cmp_lt_u32 vcc, 1, v{g}')
    a(f'v_cndmask_b32 v{MMASK}, 0, v{t1}, vcc')
    a(f'v_and_b32 v{t0}, 1, v{n}')
    a(f'v_lshlrev_b32 v{t0}, 4, v{t0}')
    a(f'v_mov_b32 v{t1}, 0x3f80')
    a(f'v_lshlrev_b32 v{t2}, v{t0}, v{t1}')
    a(f'v_lshrrev_b32 v{t0}, 1, v{n}')
    for x in range(4):
        a(f'v_cmp_eq_u32 vcc, {x}, v{t0}')
        a(f'v_cndmask_b32 v{SEL + x}, 0, v{t2}, vcc')


def mf32(d, a_, b, c):
    return f'v_mfma_f32_16x16x32_bf16 {v(d, 4)}, {a_}, {b}, {v(c, 4) if c is not None else 0}'


def wait_flag(a, lbl, vaddr, soff, imm, need, sleep, mask28=False):
    a(f's_mov_b32 s{sTRY}, 0')
    a(f'{lbl}:')
    a(f'buffer_load_dword v{T}, v{vaddr}, {WS}, s{soff} offen offset:{imm} sc1')
    a(f's_add_u32 s{sTRY}, s{sTRY}, 1')
    a(f's_cmp_gt_u32 s{sTRY}, {MAXTRY}')
    a('s_cbranch_scc1 L_fail')
    a('s_waitcnt vmcnt(0)')
    a(f'v_cmp_gt_u32 vcc, s{need}, v{T}')
    if mask28:
        a('s_and_b32 vcc_lo, vcc_lo, 0x0fffffff')
        a('s_mov_b32 vcc_hi, 0')
        a('s_cmp_eq_u32 vcc_lo, 0')
        a(f's_cbranch_scc1 {lbl}_ok')
    else:
        a(f's_cbranch_vccz {lbl}_ok')
    if sleep:
        a(f's_sleep {sleep}')
    a(f's_branch {lbl}')
    a(f'{lbl}_ok:')


def set_flag(a, hop, fl):
    a('s_waitcnt vmcnt(0)')
    a(f'v_mov_b32 v{T}, s{sIT}')
    a(f'buffer_store_dword v{T}, v{vOne}, {WS}, s{sFW} offen offset:{hop * 512} {fl}')


def group4(a, op, x, tmp):
    a(f'v_mov_b32 v{tmp}, v{x}')
    a(f'v_permlane16_swap_b32 v{x}, v{tmp}')
    a(f'{op} v{x}, v{x}, v{tmp}')
    a(f'v_mov_b32 v{tmp}, v{x}')
    a(f'v_permlane32_swap_b32 v{x}, v{tmp}')
    a(f'{op} v{x}, v{x}, v{tmp}')


def row16_sum(a, x):
    for sh in (8, 4, 2, 1):
        a(f'v_add_f32_dpp v{x}, v{x}, v{x} row_ror:{sh} row_mask:0xf bank_mask:0xf')


def project(a, wfn, nk, bfn, soff, fl):
    a(f's_add_u32 s{sT}, s{soff}, {16 * CP_R}')
    pend = []
    for aa in range(4):
        for t in range(2):
            for c2 in range(2):
                ct = 2 * aa + c2
                d = ACC + 16 * aa + 8 * t + 4 * c2
                for k in range(nk):
                    a(mf32(d, wfn(ct, k), bfn(t, k), d if k else None))
                    if pend and not (pend[0].startswith('v_') and False):
                        a(pend.pop(0))
            d = ACC + 16 * aa + 8 * t
            for x in pend:
                a(x)
            pend = ['s_nop 0'] * (1 if nk > 2 else 0)
            pend += [f'v_cvt_pk_bf16_f32 v{d + k}, v{d + 2 * k}, v{d + 2 * k + 1}' for k in range(4)]
            pend += [f'buffer_store_dwordx4 {v(d, 4)}, v{vPst}, {WS}, s{sT if t else soff} offen offset:{64 * aa} {fl}']
    for x in pend:
        a(x)


def gather(a, soff, nld):
    for i in range(nld):
        if i:
            a(f's_add_u32 s{sT}, s{soff}, {4096 * i}')
        a(f'buffer_load_dwordx4 {v(RED + 4 * i, 4)}, v{vRld}, {WS}, s{sT if i else soff} offen sc1')
    for i in range(nld):
        a(f's_waitcnt vmcnt({nld - 1 - i})')
        a(mf32(RD, v(SEL, 4), v(RED + 4 * i, 4), RD if i else None))


def c_main(a, exit_label, fl='', sfx='', prof=False):
    nst = [0]

    def st():
        if prof:
            a(f's_memtime s[{52 + 2 * (nst[0] % 6)}:{53 + 2 * (nst[0] % 6)}]')
            a('s_waitcnt lgkmcnt(0)')
            a(f'v_writelane_b32 v25, s{52 + 2 * (nst[0] % 6)}, {nst[0]}')
            nst[0] += 1
    a(f'C_loop{sfx}:')
    st()
    a(f's_add_u32 s{sIT}, s{sIT}, 1')
    a(f's_lshr_b32 s{sNEED}, s{sSEG}, 1')
    a(f's_add_u32 s{sNEED}, s{sNEED}, 1')
    a(f's_and_b32 s{sT}, s{sSEG}, 1')
    a(f's_lshl_b32 s{sT}, s{sT}, 12')
    a(f's_add_u32 s{sT + 1}, s{sT}, s{sFP}')
    wait_flag(a, f'C_wp{sfx}', vF4, sT + 1, 0, sNEED, 4)
    st()
    a(f's_and_b32 s{sT}, s{S_W}, 1')
    a(f's_lshl_b32 s{sT}, s{sT}, 12')
    a(f's_add_u32 s{sT}, s{sT}, s{sQKV}')
    a(f's_add_u32 s{sT}, s{sT}, 16384')
    for j in range(4):
        a(f'buffer_load_dwordx4 {v(Q + 4 * j, 4)}, v{vA}, {WS}, s{sT} offen offset:{j * 1024} sc1')
    for hh in range(2):
        for j in range(4):
            a(f'buffer_load_dwordx4 {v(K + 16 * hh + 4 * j, 4)}, v{vKld}, {WS}, s{sQKV} offen offset:{hh * 128 + j * 1024} sc1')
    a(f's_lshr_b32 s{sT}, s{S_W}, 1')
    a(f's_lshl_b32 s{sT}, s{sT}, 12')
    a(f's_add_u32 s{sT}, s{sT}, s{sQKV}')
    a(f's_add_u32 s{sT}, s{sT}, 8192')
    for i in range(4):
        a(f'buffer_load_dwordx4 {v(V + 4 * i, 4)}, v{vA}, {WS}, s{sT} offen offset:{i * 1024} sc1')
    a(f'buffer_load_dwordx2 {v(HP, 2)}, v{vRow}, s[{S_X}:{S_X + 3}], s{sROW} offen')
    for hh in range(2):
        for j in range(4):
            a(f's_waitcnt vmcnt({12 - 4 * hh - j})')
            a(mf32(S + 4 * hh, v(K + 16 * hh + 4 * j, 4), v(Q + 4 * j, 4), S + 4 * hh if j else None))
    a('s_waitcnt vmcnt(1)')
    for wv in range(2):
        b = V + 8 * wv
        a(f'v_swap_b32 v{b + 1}, v{b + 2}')
        a(f'v_swap_b32 v{b + 5}, v{b + 6}')
        a(f'v_swap_b32 v{b + 2}, v{b + 4}')
        a(f'v_swap_b32 v{b + 3}, v{b + 5}')
    for r in range(8):
        a(f'v_fma_f32 v{S + r}, v{S + r}, s{sC0}, v{BIAS + r}')
    a(f'v_max3_f32 v{TT}, v{S}, v{S + 1}, v{S + 2}')
    a(f'v_max3_f32 v{TT + 1}, v{S + 3}, v{S + 4}, v{S + 5}')
    a(f'v_max3_f32 v{TT}, v{TT}, v{S + 6}, v{S + 7}')
    a(f'v_max_f32 v{TT}, v{TT}, v{TT + 1}')
    st()
    a(f's_add_u32 s{sNEED}, s{sSEG}, 1')
    wait_flag(a, f'C_wr{sfx}', vF4, sFRR, 0, sNEED, 2)
    st()
    a(f's_lshl_b32 s{sT}, s{S_W}, 12')
    a(f's_add_u32 m0, s{sT}, {L_KVM}')
    for i in range(4):
        a(f'buffer_load_dwordx4 v{vA}, {WS}, s{sKVM} offen offset:{i * 1024} sc1 lds')
    a('s_waitcnt vmcnt(0)')
    st()
    for j in range(4):
        for hi in range(2):
            a(f'ds_read_b64_tr_b16 {v(KM + 4 * j + 2 * hi, 2)}, v{vKtr} offset:{L_KVM + j * 1024 + hi * 512}')
    for i in range(4):
        a(f'ds_read_b64 {v(VM + 2 * i, 2)}, v{vVm} offset:{L_KVM + (i >> 1) * 1024 + (i & 1) * 512}')
    for j in range(4):
        a(f's_waitcnt lgkmcnt({10 - 2 * j})')
        a(mf32(S + 8, v(KM + 4 * j, 4), v(Q + 4 * j, 4), S + 8 if j else None))
    for r in range(4):
        a(f'v_fma_f32 v{S + 8 + r}, v{S + 8 + r}, s{sC0}, v{MMASK}')
    a(f'v_max3_f32 v{TT + 1}, v{S + 8}, v{S + 9}, v{S + 10}')
    a(f'v_max3_f32 v{TT}, v{TT}, v{TT + 1}, v{S + 11}')
    group4(a, 'v_max_f32', TT, TT + 1)
    for r in range(0, 12, 2):
        a(f'v_pk_add_f32 {v(S + r, 2)}, {v(S + r, 2)}, {v(TT, 2)} op_sel_hi:[1,0] neg_lo:[0,1] neg_hi:[0,1]')
    for r in range(12):
        a(f'v_exp_f32 v{S + r}, v{S + r}')
    for r in range(6):
        a(f'v_cvt_pk_bf16_f32 v{PP + r}, v{S + 2 * r}, v{S + 2 * r + 1}')
    a('s_waitcnt lgkmcnt(0)')
    zs = [f'v_add_f32 v{S + r}, v{S + r}, v{S + r + 6}' for r in range(6)]
    zs += [f'v_add_f32 v{S + r}, v{S + r}, v{S + r + 3}' for r in range(3)]
    zs += [f'v_add_f32 v{S}, v{S}, v{S + 1}', f'v_add_f32 v{S}, v{S}, v{S + 2}']
    for i in range(4):
        a(mf32(OT + 4 * i, v(V + 4 * i, 4), v(PP, 4), None))
        a(zs.pop(0)); a(zs.pop(0))
    for i in range(4):
        a(f'v_mfma_f32_16x16x16_bf16 {v(OT + 4 * i, 4)}, {v(VM + 2 * i, 2)}, {v(PP + 4, 2)}, {v(OT + 4 * i, 4)}')
        if zs:
            a(zs.pop(0))
    group4(a, 'v_add_f32', S, TT)
    a(f'v_rcp_f32 v{TT}, v{S}')
    for r in range(0, 16, 2):
        a(f'v_pk_mul_f32 {v(OT + r, 2)}, {v(OT + r, 2)}, {v(TT, 2)} op_sel_hi:[1,0]')
    for r in range(8):
        a(f'v_cvt_pk_bf16_f32 v{OT + r}, v{OT + 2 * r}, v{OT + 2 * r + 1}')
    a(f'ds_write_b128 v{vOw}, {v(OT, 4)} offset:{L_O}')
    a(f'ds_write_b128 v{vOw}, {v(OT + 4, 4)} offset:{L_O + 1024}')
    a('s_waitcnt lgkmcnt(0)')
    a('s_barrier')
    for i in range(8):
        a(f'ds_read_b128 {v(OB + 4 * i, 4)}, v{vA} offset:{L_O + i * 1024}')
    a('s_waitcnt lgkmcnt(0)')
    st()
    project(a, lambda ct, k: ac(16 * ct + 4 * k, 4), 4, lambda t, k: v(OB + 16 * t + 4 * k, 4), sP1W, fl)
    st()
    set_flag(a, 0, fl)
    st()
    wait_flag(a, f'C_w1{sfx}', vFl, sFR, 0, sIT, 0)
    st()
    gather(a, sP1R, 8)
    a(f'v_lshlrev_b32 v{XR}, 16, v{HP}')
    a(f'v_and_b32 v{XR + 1}, 0xffff0000, v{HP}')
    a(f'v_lshlrev_b32 v{XR + 2}, 16, v{HP + 1}')
    a(f'v_and_b32 v{XR + 3}, 0xffff0000, v{HP + 1}')

    def round_add(dst):
        a(f'v_cvt_pk_bf16_f32 v{RD}, v{RD}, v{RD + 1}')
        a(f'v_cvt_pk_bf16_f32 v{RD + 2}, v{RD + 2}, v{RD + 3}')
        a(f'v_and_b32 v{RD + 1}, 0xffff0000, v{RD}')
        a(f'v_and_b32 v{RD + 3}, 0xffff0000, v{RD + 2}')
        a(f'v_lshlrev_b32 v{RD}, 16, v{RD}')
        a(f'v_lshlrev_b32 v{RD + 2}, 16, v{RD + 2}')
        a(f'v_pk_add_f32 {v(XR, 2)}, {v(XR, 2)}, {v(RD, 2)}')
        a(f'v_pk_add_f32 {v(XR + 2, 2)}, {v(XR + 2, 2)}, {v(RD + 2, 2)}')
        a(f'v_cvt_pk_bf16_f32 v{dst}, v{XR}, v{XR + 1}')
        a(f'v_cvt_pk_bf16_f32 v{dst + 1}, v{XR + 2}, v{XR + 3}')
    st()
    round_add(HP)
    a(f'v_lshlrev_b32 v{XR}, 16, v{HP}')
    a(f'v_and_b32 v{XR + 1}, 0xffff0000, v{HP}')
    a(f'v_lshlrev_b32 v{XR + 2}, 16, v{HP + 1}')
    a(f'v_and_b32 v{XR + 3}, 0xffff0000, v{HP + 1}')
    M, U = 72, 76
    a(f'v_pk_add_f32 {v(M, 2)}, {v(XR, 2)}, {v(XR + 2, 2)}')
    a(f'v_add_f32 v{M}, v{M}, v{M + 1}')
    row16_sum(a, M)
    a(f'v_mov_b32 v{M + 1}, v{M}')
    a(f'v_permlane16_swap_b32 v{M}, v{M + 1}')
    a(f'v_add_f32 v{M}, v{M}, v{M + 1}')
    a(f'v_mul_f32 v{M}, {f32(1 / 128)}, v{M}')
    a(f'v_pk_add_f32 {v(U, 2)}, {v(XR, 2)}, {v(M, 2)} op_sel_hi:[1,0] neg_lo:[0,1] neg_hi:[0,1]')
    a(f'v_pk_add_f32 {v(U + 2, 2)}, {v(XR + 2, 2)}, {v(M, 2)} op_sel_hi:[1,0] neg_lo:[0,1] neg_hi:[0,1]')
    a(f'v_pk_mul_f32 {v(U, 2)}, {v(U, 2)}, {v(U, 2)}')
    a(f'v_pk_fma_f32 {v(U, 2)}, {v(U + 2, 2)}, {v(U + 2, 2)}, {v(U, 2)}')
    a(f'v_add_f32 v{M + 1}, v{U}, v{U + 1}')
    row16_sum(a, M + 1)
    a(f'v_mov_b32 v{U}, v{M + 1}')
    a(f'v_permlane16_swap_b32 v{M + 1}, v{U}')
    a(f'v_add_f32 v{M + 1}, v{M + 1}, v{U}')
    a(f's_lshl_b32 s{sT}, s{S_W}, 3')
    a(f'v_mov_b32 v{U}, s{sT}')
    a(f'v_mov_b32 v{U + 1}, 0')
    a('s_mov_b64 exec, 1')
    a(f'ds_write_b64 v{U}, {v(M, 2)} offset:{L_ST}')
    a('s_mov_b64 exec, -1')
    a('s_waitcnt lgkmcnt(0)')
    a('s_barrier')
    a(f'ds_read_b128 v[80:83], v{U + 1} offset:{L_ST}')
    a(f'ds_read_b128 v[84:87], v{U + 1} offset:{L_ST + 16}')
    a('s_waitcnt lgkmcnt(0)')
    merge_stats(a, 80, M, 128)
    for r in (0, 2):
        a(f'v_pk_add_f32 {v(XR + r, 2)}, {v(XR + r, 2)}, {v(M, 2)} op_sel_hi:[1,0] neg_lo:[0,1] neg_hi:[0,1]')
        a(f'v_pk_mul_f32 {v(XR + r, 2)}, {v(XR + r, 2)}, {v(M, 2)} op_sel:[0,1] op_sel_hi:[1,1]')
    a(f'v_cvt_pk_bf16_f32 v{U}, v{XR}, v{XR + 1}')
    a(f'v_cvt_pk_bf16_f32 v{U + 1}, v{XR + 2}, v{XR + 3}')
    a(f'buffer_store_dwordx2 {v(U, 2)}, v{vHst}, {WS}, s{sHNW} offen {fl}')
    st()
    set_flag(a, 1, fl)
    a(f's_cmp_ge_u32 s{S_H}, 28')
    a(f's_cbranch_scc1 C_noffn{sfx}')
    st()
    wait_flag(a, f'C_w2{sfx}', vFl, sFR, 512, sIT, 0)
    st()
    a(f's_lshl_b32 s{sT + 1}, s{S_W}, 12')
    for t in range(2):
        a(f's_add_u32 m0, s{sT + 1}, {L_HN + t * 16384}')
        a(f's_add_u32 s{sT}, s{sHNR}, {t * 16384}')
        for i in range(4):
            a(f'buffer_load_dwordx4 v{vA}, {WS}, s{sT} offen offset:{i * 1024} sc1 lds')
    a('s_waitcnt vmcnt(0)')
    a('s_barrier')

    st()
    def rd(ks):
        return [f'ds_read_b128 {v(XB + 8 * (ks & 1) + 4 * t, 4)}, v{vHrd + (ks & 1)} offset:{L_HN + t * 16384 + (ks >> 1) * 2048}' for t in range(2)]
    for x in rd(0):
        a(x)
    for ks in range(16):
        nxt = rd(ks + 1) if ks < 15 else []
        a('s_waitcnt lgkmcnt(0)')
        for m in range(2):
            for t in range(2):
                d = GU + 8 * m + 4 * t
                a(mf32(d, ac(128 + 64 * m + 4 * ks, 4), v(XB + 8 * (ks & 1) + 4 * t, 4), d if ks else None))
                if nxt:
                    a(nxt.pop(0))
    st()
    c1 = 2 * math.sqrt(2 / math.pi) * 1.4426950408889634
    a(f's_mov_b32 s{sT}, {f32(-c1 * 0.044715)}')
    a(f'v_mov_b32 v{T}, {f32(-c1)}')
    for r in range(8):
        a(f'v_mul_f32 v{AT + r}, v{GU + r}, v{GU + r}')
    for r in range(8):
        a(f'v_fma_f32 v{AT + r}, v{AT + r}, s{sT}, v{T}')
    for r in range(8):
        a(f'v_mul_f32 v{AT + r}, v{AT + r}, v{GU + r}')
    for r in range(8):
        a(f'v_exp_f32 v{AT + r}, v{AT + r}')
    for r in range(8):
        a(f'v_add_f32 v{AT + r}, 1.0, v{AT + r}')
    for r in range(8):
        a(f'v_rcp_f32 v{AT + r}, v{AT + r}')
    for r in range(0, 8, 2):
        a(f'v_pk_mul_f32 {v(GU + r, 2)}, {v(GU + r, 2)}, {v(GU + 8 + r, 2)}')
    for r in range(0, 8, 2):
        a(f'v_pk_mul_f32 {v(AT + r, 2)}, {v(AT + r, 2)}, {v(GU + r, 2)}')
    for r in range(4):
        a(f'v_cvt_pk_bf16_f32 v{AT + r}, v{AT + 2 * r}, v{AT + 2 * r + 1}')
    for t in range(2):
        a(f'ds_write_b64 v{vActW}, {v(AT + 2 * t, 2)} offset:{L_ACT + t * 2048}')
    a('s_waitcnt lgkmcnt(0)')
    a('s_barrier')
    for i in range(4):
        a(f'ds_read_b128 {v(AB + 4 * i, 4)}, v{vA} offset:{L_ACT + i * 1024}')
    a(f's_add_u32 s{sNEED}, s{sP1W}, {CP_2}')
    a('s_waitcnt lgkmcnt(0)')
    st()
    project(a, lambda ct, k: v(WD + 8 * ct + 4 * k, 4), 2, lambda t, k: v(AB + 8 * t + 4 * k, 4), sNEED, fl)
    st()
    set_flag(a, 2, fl)
    st()
    a(f'C_noffn{sfx}:')
    wait_flag(a, f'C_w3{sfx}', vFl, sFR, 1024, sIT, 0, mask28=True)
    st()
    a(f's_add_u32 s{sNEED}, s{sP1R}, {CP_2}')
    gather(a, sNEED, 7)
    a(f'v_lshlrev_b32 v{XR}, 16, v{HP}')
    a(f'v_and_b32 v{XR + 1}, 0xffff0000, v{HP}')
    a(f'v_lshlrev_b32 v{XR + 2}, 16, v{HP + 1}')
    a(f'v_and_b32 v{XR + 3}, 0xffff0000, v{HP + 1}')
    st()
    round_add(72)
    a(f'buffer_store_dwordx2 v[72:73], v{vRow}, s[{S_O}:{S_O + 3}], s{sROW} offen')
    st()
    if prof:
        a(f's_lshl_b32 s{sT}, s{sSEG}, 7')
        a(f's_lshl_b32 s{sT + 1}, s{S_H}, 2')
        a(f's_add_u32 s{sT}, s{sT}, s{sT + 1}')
        a(f's_add_u32 s{sT}, s{sT}, s{S_W}')
        a(f's_lshl_b32 s{sT}, s{sT}, 7')
        a(f's_add_u32 s{sT}, s{sT}, {PROF + 0x10000}')
        a('s_mov_b32 exec_hi, 0')
        a(f'buffer_store_dword v25, v{vFl}, {WS}, s{sT} offen')
        a('s_mov_b32 exec_hi, -1')
    a(f's_add_u32 s{sSEG}, s{sSEG}, {NC_}')
    a(f's_add_u32 s{sQKV}, s{sQKV}, {NC_ * QKV_S}')
    a(f's_add_u32 s{sKVM}, s{sKVM}, {NC_ * KVM_S}')
    a(f's_add_u32 s{sROW}, s{sROW}, {NC_ * 32768}')
    a(f's_cmp_lt_u32 s{sSEG}, 64')
    a(f's_cbranch_scc1 C_loop{sfx}')
    a(f's_branch {exit_label}')
```

```python
from common import *

VD = 16
VT = 20
VDO = 24
VTO = 26
VTMP = 28
WBUF = 32
S_SO = 20
S_A, S_B = 21, 22
POLICY = {'f': ''}


def qkv_addr_setup(a):
    t0, t1, t2, t3 = VTMP, VTMP + 1, VTMP + 2, VTMP + 3
    a(f'v_lshrrev_b32 v{t0}, 4, v0')
    a(f'v_and_b32 v{t1}, 15, v0')
    a(f'v_and_b32 v{t2}, 1, v{t0}')
    a(f'v_lshlrev_b32 v{t2}, 1, v{t2}')
    a(f'v_xor_b32 v{t1}, v{t1}, v{t2}')
    a(f'v_lshlrev_b32 v{t0}, 13, v{t0}')
    for q in range(4):
        x = ((q & 1) << 2) | ((q >> 1) << 3)
        a(f'v_xor_b32 v{t2}, {x}, v{t1}')
        a(f'v_lshl_add_u32 v{t2}, v{t2}, 4, v{t0}')
        a(f'v_add_u32 v{VD + q}, {4 * q * 8192 - q * 1024}, v{t2}')
    a(f'v_lshrrev_b32 v{t0}, 5, v0')
    a(f'v_lshlrev_b32 v{t0}, 4, v{t0}')
    a(f'v_bfe_u32 v{t1}, v0, 4, 1')
    a(f'v_lshl_add_u32 v{t0}, v{t1}, 2, v{t0}')
    a(f'v_bfe_u32 v{t2}, v0, 2, 1')
    a(f'v_add_u32 v{t0}, v{t0}, v{t2}')
    a(f'v_bfe_u32 v{t3}, v0, 3, 1')
    a(f'v_lshl_add_u32 v{t0}, v{t3}, 3, v{t0}')
    a(f'v_lshl_add_u32 v{t2}, v{t1}, 1, v{t2}')
    a(f'v_lshl_add_u32 v{t2}, v{t3}, 2, v{t2}')
    a(f'v_lshlrev_b32 v{t2}, 1, v{t2}')
    a(f'v_bfe_u32 v{t1}, v0, 1, 1')
    a(f's_lshl_b32 s{S_A}, s{S_W}, 2')
    a(f'v_add_u32 v{t1}, s{S_A}, v{t1}')
    a(f'v_xor_b32 v{t1}, v{t1}, v{t2}')
    a(f'v_lshlrev_b32 v{t0}, 8, v{t0}')
    a(f'v_and_b32 v{t3}, 1, v0')
    a(f'v_lshl_add_u32 v{t0}, v{t3}, 3, v{t0}')
    a(f'v_lshl_add_u32 v{VT}, v{t1}, 4, v{t0}')
    a(f'v_xor_b32 v{VT + 1}, 32, v{VT}')
    a(f'v_add_u32 v{VT + 2}, 0x10000, v{VT}')
    a(f'v_add_u32 v{VT + 3}, 0x10000, v{VT + 1}')


def wo_addr_setup(a):
    t0, t1, t2, t3 = VTMP, VTMP + 1, VTMP + 2, VTMP + 3
    a(f's_lshr_b32 s{S_A}, s{S_W}, 1')
    a(f's_lshl_b32 s{S_A}, s{S_A}, 3')
    a(f'v_xor_b32 v{t0}, s{S_A}, v0')
    a(f'v_lshlrev_b32 v{VDO}, 4, v{t0}')
    a(f'v_xor_b32 v{VDO + 1}, 64, v{VDO}')
    a(f'v_bfe_u32 v{t1}, v0, 4, 1')
    a(f'v_lshrrev_b32 v{t0}, 5, v0')
    a(f'v_lshlrev_b32 v{t0}, 2, v{t0}')
    a(f'v_lshl_add_u32 v{t0}, v{t1}, 4, v{t0}')
    a(f'v_bfe_u32 v{t2}, v0, 2, 1')
    a(f'v_add_u32 v{t0}, v{t0}, v{t2}')
    a(f'v_lshl_add_u32 v{t2}, v{t1}, 1, v{t2}')
    a(f'v_lshlrev_b32 v{t2}, 2, v{t2}')
    a(f'v_bfe_u32 v{t1}, v0, 3, 1')
    a(f'v_bfe_u32 v{t3}, v0, 1, 1')
    a(f'v_lshl_add_u32 v{t1}, v{t1}, 1, v{t3}')
    a(f's_lshl_b32 s{S_A}, s{S_W}, 2')
    a(f'v_add_u32 v{t1}, s{S_A}, v{t1}')
    a(f'v_xor_b32 v{t1}, v{t1}, v{t2}')
    a(f'v_lshlrev_b32 v{t0}, 10, v{t0}')
    a(f'v_and_b32 v{t3}, 1, v0')
    a(f'v_lshl_add_u32 v{t0}, v{t3}, 3, v{t0}')
    a(f'v_lshl_add_u32 v{VTO}, v{t1}, 4, v{t0}')
    a(f'v_add_u32 v{VTO + 1}, 0x10000, v{VTO}')


class QkvPiece:
    ndma = 8

    def __init__(self, ptr, quarter, dst, keep=None):
        self.ptr, self.quarter, self.dst = ptr, quarter, dst
        self.keep = keep
        if keep:
            self.dst = lambda d, n: v(WBUF + d - 32 * quarter, n)

    def issue(self, a, slot):
        srd(a, S_T, self.ptr, 512 * 8192)
        for uu in range(2):
            a(f's_lshl_b32 s{S_A}, s{S_W}, 18')
            a(f's_lshl_b32 s{S_B}, s{S_H}, 8')
            a(f's_add_u32 s{S_A}, s{S_A}, s{S_B}')
            a(f's_add_u32 s{S_SO}, s{S_A}, {(128 * self.quarter + 16 * uu) * 8192}')
            a(f's_lshl_b32 s{S_A}, s{S_W}, 13')
            a(f's_add_u32 m0, s{S_A}, {slot * 32768 + 16 * uu * 256}')
            for q in range(4):
                a(f'buffer_load_dwordx4 v{VD + q}, s[{S_T}:{S_T + 3}], s{S_SO} offen offset:{q * 1024} {POLICY["f"]} lds')

    def consume(self, a, slot):
        for cc in range(2):
            for ft in range(2):
                for hh in range(2):
                    for x in range(2):
                        d = 16 * (2 * self.quarter + cc) + 8 * ft + 4 * hh + 2 * x
                        imm = (slot & 1) * 32768 + (64 * cc + 32 * hh + 2 * x) * 256
                        a(f'ds_read_b64_tr_b16 {self.dst(d, 2)}, v{VT + ft + 2 * (slot >> 1)} offset:{imm}')

    def after(self, a, slot):
        if self.keep:
            write_back(a, slot, *self.keep)


class WoPieceR:
    ndma = 8

    def __init__(self, kk, dst=None, keep=None):
        self.kk, self.keep = kk, keep
        self.dst = dst if dst else (lambda d, n: v(WBUF + d, n))

    def issue(self, a, slot):
        srd(a, S_T, P_WO, 4096 * 1024)
        for uu in range(2):
            a(f's_lshl_b32 s{S_A}, s{S_W}, 13')
            a(f's_lshl_b32 s{S_B}, s{S_H}, 17')
            a(f's_add_u32 s{S_B}, s{S_A}, s{S_B}')
            a(f's_add_u32 s{S_SO}, s{S_B}, {(32 * self.kk + 4 * uu) * 1024}')
            a(f's_add_u32 m0, s{S_A}, {slot * 32768 + 4 * uu * 1024}')
            for q in range(4):
                a(f'buffer_load_dwordx4 v{VDO + (q & 1)}, s[{S_T}:{S_T + 3}], s{S_SO} offen offset:{q * 1024} {POLICY["f"]} lds')

    def consume(self, a, slot):
        for j in range(4):
            for hh in range(2):
                for pp in range(2):
                    imm = (slot & 1) * 32768 + (8 * hh + 2 * pp) * 1024 + 256 * j
                    a(f'ds_read_b64_tr_b16 {self.dst(8 * j + 4 * hh + 2 * pp, 2)}, v{VTO + (slot >> 1)} offset:{imm}')

    def after(self, a, slot):
        if self.keep:
            write_back(a, slot, *self.keep)


def write_back(a, slot, vA, vB):
    a(f's_lshl_b32 s{S_A}, s{S_W}, 13')
    a(f'v_add_u32 v{VTMP}, s{S_A}, v{vB if slot >> 1 else vA}')
    for q in range(8):
        a(f'ds_write_b128 v{VTMP}, {v(WBUF + 4 * q, 4)} offset:{(slot & 1) * 32768 + q * 1024}')


def ring_load(a, pieces, hook=None):
    n = len(pieces)
    for p in range(min(4, n)):
        pieces[p].issue(a, p % 4)
    if hook:
        hook(sum(x.ndma for x in pieces[:4]))
    for p in range(n):
        later = sum(pieces[q].ndma for q in range(p + 1, min(p + 4, n)))
        a(f's_waitcnt vmcnt({later})')
        a('s_barrier')
        pieces[p].consume(a, p % 4)
        a('s_waitcnt lgkmcnt(0)')
        a('s_barrier')
        pieces[p].after(a, p % 4)
        if p + 4 < n:
            pieces[p + 4].issue(a, p % 4)
    a('s_waitcnt lgkmcnt(0)')


VDR = 16
VTR = 20
VDF = 22
VTF = 24


def c_addr_setup(a):
    t0, t1, t2 = VTMP, VTMP + 1, VTMP + 2
    for q in range(4):
        a(f'v_xor_b32 v{t0}, {4 * q}, v0')
        a(f'v_lshlrev_b32 v{VDR + q}, 4, v{t0}')
    a(f'v_lshrrev_b32 v{t0}, 2, v0')
    a(f'v_and_b32 v{t1}, 3, v{t0}')
    a(f'v_lshlrev_b32 v{t1}, 2, v{t1}')
    a(f'v_and_b32 v{t2}, 3, v0')
    a(f'v_add_u32 v{t1}, v{t1}, v{t2}')
    a(f's_lshl_b32 s{S_A}, s{S_W}, 4')
    a(f'v_add_u32 v{t1}, s{S_A}, v{t1}')
    a(f'v_lshlrev_b32 v{t0}, 10, v{t0}')
    a(f'v_lshl_add_u32 v{VTR}, v{t1}, 4, v{t0}')
    a(f'v_add_u32 v{VTR + 1}, 0x10000, v{VTR}')
    a(f'v_lshrrev_b32 v{t0}, 3, v0')
    a(f'v_mul_u32_u24 v{t0}, 3584, v{t0}')
    a(f'v_and_b32 v{t1}, 7, v0')
    a(f'v_bfe_u32 v{t2}, v0, 4, 1')
    a(f'v_lshlrev_b32 v{t2}, 1, v{t2}')
    a(f'v_xor_b32 v{t1}, v{t1}, v{t2}')
    a(f'v_lshl_add_u32 v{VDF}, v{t1}, 4, v{t0}')
    a(f'v_xor_b32 v{t1}, 4, v{t1}')
    a(f'v_lshl_add_u32 v{VDF + 1}, v{t1}, 4, v{t0}')
    a(f'v_lshrrev_b32 v{t0}, 4, v0')
    a(f'v_lshlrev_b32 v{t0}, 3, v{t0}')
    a(f'v_bfe_u32 v{t1}, v0, 2, 2')
    a(f'v_add_u32 v{t0}, v{t0}, v{t1}')
    a(f'v_lshlrev_b32 v{t0}, 7, v{t0}')
    a(f'v_bfe_u32 v{t1}, v0, 3, 2')
    a(f'v_lshlrev_b32 v{t1}, 1, v{t1}')
    a(f'v_bfe_u32 v{t2}, v0, 1, 1')
    a(f's_lshl_b32 s{S_A}, s{S_W}, 1')
    a(f'v_add_u32 v{t2}, s{S_A}, v{t2}')
    a(f'v_xor_b32 v{t1}, v{t1}, v{t2}')
    a(f'v_lshl_add_u32 v{t0}, v{t1}, 4, v{t0}')
    a(f'v_and_b32 v{t1}, 1, v0')
    a(f'v_lshl_add_u32 v{VTF}, v{t1}, 3, v{t0}')
    a(f'v_add_u32 v{VTF + 1}, 0x10000, v{VTF}')


class RowPiece:
    ndma = 8

    def __init__(self, ptr, nbytes, hshift, kk, dst):
        self.ptr, self.nbytes, self.hshift, self.kk, self.dst = ptr, nbytes, hshift, kk, dst

    def issue(self, a, slot):
        srd(a, S_T, self.ptr, self.nbytes)
        for uu in range(2):
            a(f's_lshl_b32 s{S_A}, s{S_W}, 13')
            a(f's_lshl_b32 s{S_B}, s{S_H}, {self.hshift}')
            a(f's_add_u32 s{S_B}, s{S_A}, s{S_B}')
            a(f's_add_u32 s{S_SO}, s{S_B}, {(32 * self.kk + 4 * uu) * 1024}')
            a(f's_add_u32 m0, s{S_A}, {slot * 32768 + 4 * uu * 1024}')
            for q in range(4):
                a(f'buffer_load_dwordx4 v{VDR + q}, s[{S_T}:{S_T + 3}], s{S_SO} offen offset:{q * 1024} {POLICY["f"]} lds')

    def consume(self, a, slot):
        for aa in range(4):
            a(f'v_xor_b32 v{VTMP + aa}, {64 * aa}, v{VTR + (slot >> 1)}')
        for ct in range(8):
            for x in range(2):
                imm = (slot & 1) * 32768 + 16 * x * 1024 + 8 * (ct & 1)
                a(f'ds_read_b64_tr_b16 {self.dst(ct, x)}, v{VTMP + (ct >> 1)} offset:{imm}')

    def after(self, a, slot):
        pass


class FfnPiece:
    ndma = 8

    def __init__(self, ptr, half, dst):
        self.ptr, self.half, self.dst = ptr, half, dst

    def issue(self, a, slot):
        srd(a, S_T, self.ptr, 512 * 3584)
        a(f's_mul_i32 s{S_A}, s{S_W}, {64 * 3584}')
        a(f's_lshl_b32 s{S_B}, s{S_H}, 7')
        a(f's_add_u32 s{S_B}, s{S_A}, s{S_B}')
        a(f's_lshl_b32 s{S_A}, s{S_W}, 13')
        for u in range(8):
            a(f's_add_u32 s{S_SO}, s{S_B}, {(256 * self.half + 8 * u) * 3584}')
            a(f's_add_u32 m0, s{S_A}, {slot * 32768 + u * 1024}')
            a(f'buffer_load_dwordx4 v{VDF + (u & 1)}, s[{S_T}:{S_T + 3}], s{S_SO} offen {POLICY["f"]} lds')

    def consume(self, a, slot):
        for k in range(8):
            for x in range(2):
                imm = (slot & 1) * 32768 + (32 * k + 4 * x) * 128
                a(f'ds_read_b64_tr_b16 {self.dst(8 * self.half + k, x)}, v{VTF + (slot >> 1)} offset:{imm}')

    def after(self, a, slot):
        pass
```

```python
import sys, json
from common import *
from weights import *
import rec, prod, cons

WS = f's[{S_WS}:{S_WS + 3}]'
DBG = f's[{S_DBG}:{S_DBG + 3}]'
S_MODE = 23
S_WG = 3
S_U = 96
RANK_OFF = (0, 64, 68, 128, 132, 192, 196, 200, 204)
ROPT = {"d1": [19, 19, 19, 19], "f1": [0, 0, 0, 0], "x1": [0, 0, 10, 20], "d2": [60, 60, 60, 60]}


def arrive_issue(a, lbl):
    a('s_barrier')
    a(f's_mov_b32 s{S_U + 2}, 0')
    a(f's_cmp_lg_u32 s{S_W}, 0')
    a(f's_cbranch_scc1 {lbl}_skip')
    a(f's_and_b32 s{S_U}, s{S_WG}, 3')
    a(f's_lshl_b32 s{S_U}, s{S_U}, 6')
    a(f's_lshl_b32 s{S_U + 1}, s{S_MODE}, 2')
    a(f's_add_u32 s{S_U}, s{S_U}, s{S_U + 1}')
    a(f's_add_u32 s{S_U}, s{S_U}, 32')
    a(f's_mov_b32 s{S_U + 2}, 1')
    a(f's_atomic_add s{S_U + 2}, s[{P_DBG}:{P_DBG + 1}], s{S_U} glc')
    a(f'{lbl}_skip:')


def arrive_finish(a, lbl):
    a('s_waitcnt lgkmcnt(0)')
    a(f's_cmp_lg_u32 s{S_U + 2}, 63')
    a(f's_cbranch_scc1 {lbl}_done')
    a(f's_lshl_b32 s{S_U + 1}, s{S_MODE}, 2')
    a(f's_add_u32 s{S_U}, s{S_U + 1}, 40')
    a(f's_mov_b32 s{S_U + 2}, 1')
    a(f's_atomic_add s{S_U + 2}, s[{P_DBG}:{P_DBG + 1}], s{S_U} glc')
    a('s_waitcnt lgkmcnt(0)')
    a(f's_cmp_lg_u32 s{S_U + 2}, 3')
    a(f's_cbranch_scc1 {lbl}_done')
    a('v_mbcnt_lo_u32_b32 v126, -1, 0')
    a('v_mbcnt_hi_u32_b32 v126, -1, v126')
    a(f's_mov_b32 s{S_U + 2}, 3')
    a(f's_cmp_lg_u32 s{S_MODE}, 0')
    a(f's_cbranch_scc1 {lbl}_tell')
    a('v_lshlrev_b32 v125, 2, v126')
    a('v_mov_b32 v127, 0')
    a(f'buffer_atomic_add v127, v125, {DBG}, 0 offen sc0')
    a('s_waitcnt vmcnt(0)')
    a('v_cmp_ne_u32 vcc, 32, v127')
    m = sum(1 << (o // 4) for o in RANK_OFF[:8])
    a(f's_and_b32 s{S_U}, vcc_lo, {m & 0xffffffff}')
    a(f's_and_b32 s{S_U + 1}, vcc_hi, {m >> 32}')
    a(f's_or_b32 s{S_U}, s{S_U}, s{S_U + 1}')
    a(f's_cselect_b32 s{S_U + 2}, 2, 1')
    if FORCE_SLOW:
        a(f's_mov_b32 s{S_U + 2}, 2')
    a(f'{lbl}_tell:')
    a('v_lshlrev_b32 v126, 7, v126')
    a(f'v_mov_b32 v127, s{S_U + 2}')
    for i in range(4):
        a(f's_mov_b32 s{S_U}, {MBOX + i * 8192}')
        a(f'buffer_store_dword v127, v126, {WS}, s{S_U} offen sc1')
    a(f'{lbl}_done:')


def arrive(a, lbl):
    arrive_issue(a, lbl)
    arrive_finish(a, lbl)


def prefetch(a):
    a(f's_sub_u32 s{S_U}, s{S_XCC}, {1 + NP_}')
    a(f's_and_b32 s{S_U + 1}, s{S_U}, 3')
    a(f's_lshl_b32 s{S_U + 1}, s{S_U + 1}, 5')
    a(f's_lshr_b32 s{S_U + 2}, s{S_WG}, 3')
    a(f's_add_u32 s{S_U + 1}, s{S_U + 1}, s{S_U + 2}')
    a(f's_lshl_b32 s{S_U + 1}, s{S_U + 1}, 2')
    a(f's_add_u32 s{S_U + 1}, s{S_U + 1}, s{S_W}')
    a('v_lshlrev_b32 v2, 6, v0')
    a(f's_cmp_eq_u32 s{S_U}, 4')
    a('s_cbranch_scc1 L_pf_ffn')
    a(f's_lshl_b32 s{S_U + 1}, s{S_U + 1}, 12')
    a(f's_add_u32 s{S_U + 2}, s{S_U + 1}, 0x200000')
    for n, p in enumerate((P_WK, P_WV, P_WQ, P_WO)):
        srd(a, S_T, p, 4096 * 1024)
        a(f'buffer_load_dword v{100 + 2 * n}, v2, s[{S_T}:{S_T + 3}], s{S_U + 1} offen')
        a(f'buffer_load_dword v{101 + 2 * n}, v2, s[{S_T}:{S_T + 3}], s{S_U + 2} offen')
    a('s_branch L_pf_done')
    a('L_pf_ffn:')
    a(f's_lshl_b32 s{S_U + 1}, s{S_U + 1}, 12')
    for n, p in enumerate((P_WG, P_WU, P_WD)):
        srd(a, S_T, p, 1792 * 1024)
        for k in range(4):
            a(f's_add_u32 s{S_U + 2}, s{S_U + 1}, {k * 0x80000}')
            a(f'buffer_load_dword v{100 + 4 * n + k}, v2, s[{S_T}:{S_T + 3}], s{S_U + 2} offen')
    a('L_pf_done:')


def wait_go(a, lbl):
    a(f's_lshl_b32 s{S_U}, s{S_WG}, 7')
    a(f's_add_u32 s{S_U}, s{S_U}, {MBOX}')
    a(f's_lshl_b32 s{S_U + 1}, s{S_MODE}, 1')
    a(f's_mov_b32 s{S_U + 2}, 0')
    a(f'{lbl}:')
    a(f'buffer_load_dword v127, off, {WS}, s{S_U} sc1')
    a(f's_add_u32 s{S_U + 2}, s{S_U + 2}, 1')
    a(f's_cmp_gt_u32 s{S_U + 2}, 400000')
    a('s_cbranch_scc1 L_fail')
    a('s_waitcnt vmcnt(0)')
    a(f'v_readfirstlane_b32 s{S_U + 3}, v127')
    a(f's_cmp_eq_u32 s{S_U + 3}, s{S_U + 1}')
    a(f's_cbranch_scc0 {lbl}_got')
    a('s_sleep 2')
    a(f's_branch {lbl}')
    a(f'{lbl}_got:')
    a(f's_cmp_eq_u32 s{S_U + 3}, 2')
    a('s_cbranch_scc1 L_redo')


def lane_id(a):
    a('v_mbcnt_lo_u32_b32 v0, -1, 0')
    a('v_mbcnt_hi_u32_b32 v0, -1, v0')


def stamp(a, k):
    if STAMPS:
        a(f's_memrealtime s[{S_U}:{S_U + 1}]')
        a(f's_lshl_b32 s{S_U + 2}, s{S_WG}, 7')
        a(f's_lshl_b32 s{S_U + 3}, s{S_W}, 5')
        a(f's_add_u32 s{S_U + 2}, s{S_U + 2}, s{S_U + 3}')
        a(f's_add_u32 s{S_U + 2}, s{S_U + 2}, {PROF + 4 * k}')
        a('s_waitcnt lgkmcnt(0)')
        a(f'v_mov_b32 v127, s{S_U}')
        a(f'buffer_store_dword v127, off, {WS}, s{S_U + 2}')


def build(opt={}):
    global FORCE_SLOW, STAMPS
    FORCE_SLOW = opt.get('force_slow', False)
    STAMPS = opt.get('stamps', False)
    slow = opt.get('slow', False)
    ropt = dict(ROPT, **opt.get('r', {}))
    a = Asm()
    a('s_cmp_ge_u32 s2, 256')
    a('s_cbranch_scc1 L_end')
    a(f's_mov_b32 s{S_WG}, s2')
    load_args(a)
    stamp(a, 0)
    a(f's_mov_b32 s{S_MODE}, 0')
    a('v_mov_b32 v1, 0')
    a(f's_mov_b32 s{S_U + 3}, 1')
    a(f's_cmp_lg_u32 s{S_W}, 0')
    a('s_cbranch_scc1 L_norank0')
    a(f's_mov_b32 s{S_U}, {RANK_OFF[8]}')
    for x in range(8):
        a(f's_cmp_eq_u32 s{S_XCC}, {x}')
        a(f's_cselect_b32 s{S_U}, {RANK_OFF[x]}, s{S_U}')
    a(f's_atomic_add s{S_U + 3}, s[{P_DBG}:{P_DBG + 1}], s{S_U} glc')
    a('L_norank0:')
    for r in range(4):
        a(f'v_mov_b32 v{4 + r}, -1')
    a('v_lshlrev_b32 v2, 4, v0')
    a(f's_lshl_b32 s{S_U}, s{S_WG}, 2')
    a(f's_add_u32 s{S_U}, s{S_U}, s{S_W}')
    a(f's_lshr_b32 s{S_U + 1}, s{S_U}, 9')
    a(f's_lshl_b32 s{S_U + 1}, s{S_U + 1}, 20')
    a(f's_and_b32 s{S_U + 2}, s{S_U}, 511')
    a(f's_lshl_b32 s{S_U + 2}, s{S_U + 2}, 10')
    a(f's_add_u32 s{S_U + 1}, s{S_U + 1}, s{S_U + 2}')
    a(f's_add_u32 s{S_U + 1}, s{S_U + 1}, {RPART}')
    a(f's_cmp_lt_u32 s{S_U + 2}, {32 * rec.RP_R2}')
    a('s_cbranch_scc0 L_noinb')
    a(f'buffer_store_dwordx4 v[4:7], v2, {WS}, s{S_U + 1} offen sc1')
    a('L_noinb:')
    a(f's_cmp_lt_u32 s{S_U}, 16')
    a('s_cbranch_scc0 L_nom')
    a(f's_lshl_b32 s{S_U + 1}, s{S_U}, 10')
    a(f's_add_u32 s{S_U + 1}, s{S_U + 1}, {RM}')
    a(f'buffer_store_dwordx4 v[4:7], v2, {WS}, s{S_U + 1} offen sc1')
    a('L_nom:')
    a(f's_cmp_lg_u32 s{S_W}, 1')
    a('s_cbranch_scc1 L_nofl')
    a('v_and_b32 v3, 31, v0')
    a('v_lshlrev_b32 v3, 2, v3')
    a('v_lshrrev_b32 v8, 5, v0')
    a('v_lshl_add_u32 v3, v8, 15, v3')
    a(f's_lshl_b32 s{S_U + 1}, s{S_WG}, 7')
    a(f's_add_u32 s{S_U + 1}, s{S_U + 1}, {FLAG}')
    a(f'buffer_store_dword v1, v3, {WS}, s{S_U + 1} offen sc1')
    a('L_nofl:')
    if opt.get('pf'):
        a(f's_cmp_le_u32 s{S_XCC}, {NP_}')
        a('s_cbranch_scc1 L_pf_done')
        a(f's_cmp_gt_u32 s{S_XCC}, 7')
        a('s_cbranch_scc1 L_pf_done')
        prefetch(a)
    a(f's_cmp_lg_u32 s{S_W}, 0')
    a('s_cbranch_scc1 L_norank')
    a('s_waitcnt lgkmcnt(0)')
    a(f'v_mov_b32 v16, s{S_U + 3}')
    a('ds_write_b32 v1, v16')
    a('s_waitcnt lgkmcnt(0)')
    a('L_norank:')
    a('s_barrier')
    a('ds_read_b32 v2, v1')
    a('s_waitcnt lgkmcnt(0)')
    a(f'v_readfirstlane_b32 s{S_H}, v2')
    a('s_barrier')
    a('L_role:')
    lane_id(a)
    stamp(a, 1)
    a(f's_cmp_ge_u32 s{S_H}, 32')
    a('s_cbranch_scc1 L_none')
    a(f's_cmp_gt_u32 s{S_XCC}, 7')
    a('s_cbranch_scc1 L_none')
    a(f's_cmp_eq_u32 s{S_XCC}, 0')
    a('s_cbranch_scc1 L_R')
    a(f's_cmp_le_u32 s{S_XCC}, {NP_}')
    a('s_cbranch_scc1 L_P')

    a(f's_sub_u32 s{S_G}, s{S_XCC}, {1 + NP_}')
    cons.c_scalars(a)
    a(f's_cmp_ge_u32 s{S_G}, 4')
    a('s_cbranch_scc1 L_noln')
    a(f's_lshl_b32 s{S_U}, s{S_G}, 5')
    a(f's_add_u32 s{S_U}, s{S_U}, s{S_H}')
    prod.ln1(a, S_U, 'LN')
    a('L_noln:')
    a('s_waitcnt vmcnt(0)')
    arrive(a, 'C_arr')
    stamp(a, 2)
    c_addr_setup(a)
    wait_go(a, 'C_go')
    if opt.get('cwait'):
        a(f's_mov_b32 s{cons.sNEED}, {opt["cwait"]}')
        a(f'v_mov_b32 v1, 0')
        cons.wait_flag(a, 'C_w0', 1, cons.sFP, 0, cons.sNEED, 8)
    stamp(a, 3)
    POLICY['f'] = opt.get('cpol', '')
    ring_load(a, cons.c_pieces())
    cons.c_setup(a)
    stamp(a, 4)
    if slow:
        a(f's_cmp_lg_u32 s{S_MODE}, 0')
        a('s_cbranch_scc1 C_loop_s')
    cons.c_main(a, 'L_exit', prof=opt.get('cprof'))
    if slow:
        cons.c_main(a, 'L_exit', 'sc1', '_s')

    a('L_P:')
    a(f's_sub_u32 s{S_G}, s{S_XCC}, 1')
    qkv_addr_setup(a)
    prod.p_setup(a)
    a('s_waitcnt vmcnt(0)')
    arrive_issue(a, 'P_arr')

    def hook_p(n):
        arrive_finish(a, 'P_arr')
    POLICY['f'] = opt.get('ppol', '')
    ring_load(a, prod.p_pieces(), hook_p)
    stamp(a, 3)
    wait_go(a, 'P_go')
    stamp(a, 4)
    prod.p_main(a, 'L_exit')

    a('L_R:')
    qkv_addr_setup(a)
    wo_addr_setup(a)
    rec.setup(a)
    a('s_waitcnt vmcnt(0)')
    arrive_issue(a, 'R_arr')

    def hook_r(n):
        arrive_finish(a, 'R_arr')
    POLICY['f'] = opt.get('rpol', '')
    ring_load(a, rec.pieces(), hook_r)
    stamp(a, 3)
    wait_go(a, 'R_go')
    stamp(a, 4)
    rec.first_kv(a)
    stamp(a, 5)
    for sfx, fl in ((('', ''), ('s', 'sc1')) if slow else (('', ''),)):
        if slow and not sfx:
            a(f's_cmp_lg_u32 s{S_MODE}, 0')
            a('s_cbranch_scc1 L_ws')
        a(f'L_w{sfx}:')
        for w in range(1, 4):
            a(f's_cmp_eq_u32 s{S_W}, {w}')
            a(f's_cbranch_scc1 L_w{w}{sfx}')
        for w in range(4):
            a(f'L_w{w}{sfx}:')
            rec.first_m(a, w)
            a('s_waitcnt vmcnt(0) lgkmcnt(0)')
            rec.main_loop(a, w, None, opt=ropt, fl=fl, sfx=sfx)

    a('L_none:')
    a('s_waitcnt vmcnt(0)')
    arrive(a, 'N_arr')
    wait_go(a, 'N_go')
    a('s_branch L_fail')
    a('L_redo:')
    if slow:
        a('s_waitcnt vmcnt(0) lgkmcnt(0)')
        a('s_barrier')
        a(f's_mov_b32 s{S_MODE}, 1')
        a(f's_lshr_b32 s{S_XCC}, s{S_WG}, 5')
        a(f's_and_b32 s{S_H}, s{S_WG}, 31')
        a('s_branch L_role')
    a('L_fail:')
    a('v_mov_b32 v126, 56')
    a('v_mov_b32 v127, 1')
    a(f'buffer_atomic_add v127, v126, {DBG}, 0 offen')
    a('L_exit:')
    stamp(a, 6)
    a('s_waitcnt vmcnt(0) lgkmcnt(0)')
    a('L_end:')
    a('s_endpgm')
    n = a.pad(verbose=opt.get('v'))
    k = NAME + '_kernel'
    return wrap([(k, 256, 256, 163840)], [(k, a)])


if __name__ == '__main__':
    opt = json.loads(sys.argv[2]) if len(sys.argv) > 2 else {}
    open(sys.argv[1], 'w').write(build(opt))
```
